```python
import torch

def _softmax(x, axis=-1):
    return torch.softmax(x, dim=axis)

def _gelu(x):
    return torch.nn.functional.gelu(x, approximate='tanh')

def _silu(x):
    return torch.nn.functional.silu(x)

def _sigmoid(x):
    return torch.sigmoid(x)

def _layernorm(x, axis=-1, eps=1e-05):
    m = x.mean(dim=axis, keepdim=True)
    v = x.var(dim=axis, keepdim=True, unbiased=False)
    return (x - m) / torch.sqrt(v + eps)

def _scatter_add(tgt, idx, src, axis=0):
    return tgt.clone().index_add_(axis, idx, src)

def _segment_sum(src, seg, n):
    out = torch.zeros((n,) + src.shape[1:], dtype=src.dtype)
    return out.index_add_(0, seg, src)

def _pad(x, pw):
    flat = tuple((v for pair in reversed(pw) for v in pair))
    return torch.nn.functional.pad(x, flat)
kernel_name = 'standalone__tree_speculative_verify_tree_attention_over_candidate_token_tree__sampling'

def setup_inputs():

    _w = lambda a: (lambda t: t.to(torch.bfloat16) if t.is_floating_point() else t)(torch.as_tensor(a))
    B, Hq, Hkv, T, C, D = (16, 32, 8, 8, 2048, 128)
    tree_mask = torch.zeros((B, T, T), dtype=float)
    for b in range(B):
        parent = torch.zeros(T, dtype=torch.int64)
        for i in range(1, T):
            parent[i] = int(torch.randint(0, i, (1,)).item())
        for i in range(T):
            j = i
            tree_mask[b, i, j] = 1.0
            while j > 0:
                j = parent[j]
                tree_mask[b, i, j] = 1.0
    return {'q': _w((lambda *s: torch.randn(*s, dtype=torch.bfloat16) * 0.8)(B, Hq, T, D)), 'k_cache': _w((lambda *s: torch.randn(*s, dtype=torch.bfloat16) * 0.8)(B, Hkv, C, D)), 'v_cache': _w((lambda *s: torch.randn(*s, dtype=torch.bfloat16) * 0.05)(B, Hkv, C, D)), 'k_tree': _w((lambda *s: torch.randn(*s, dtype=torch.bfloat16) * 0.8)(B, Hkv, T, D)), 'v_tree': _w((lambda *s: torch.randn(*s, dtype=torch.bfloat16) * 0.05)(B, Hkv, T, D)), 'tree_mask': _w(tree_mask)}

def reference(q, k_cache, v_cache, k_tree, v_tree, tree_mask):
    B, Hq, T, D = q.shape
    Hkv, C = (k_cache.shape[1], k_cache.shape[2])
    rep = Hq // Hkv
    kc = (lambda x, n, axis: torch.repeat_interleave(x, n, dim=axis))(k_cache, rep, axis=1)
    vc = (lambda x, n, axis: torch.repeat_interleave(x, n, dim=axis))(v_cache, rep, axis=1)
    kt = (lambda x, n, axis: torch.repeat_interleave(x, n, dim=axis))(k_tree, rep, axis=1)
    vt = (lambda x, n, axis: torch.repeat_interleave(x, n, dim=axis))(v_tree, rep, axis=1)
    k = torch.concatenate([kc, kt], axis=2)
    v = torch.concatenate([vc, vt], axis=2)
    scale = D ** (-0.5)
    scores = torch.einsum('bhqd,bhkd->bhqk', q, k) * scale
    ctx_mask = torch.ones((B, 1, T, C), dtype=scores.dtype)
    tm = tree_mask[:, None, :, :].clone()
    full_mask = torch.concatenate([ctx_mask, tm], axis=-1)
    scores = scores + (1.0 - full_mask) * -1000000000.0
    p = _softmax(scores, axis=-1)
    return torch.einsum('bhqk,bhkd->bhqd', p, v)
```

```python
import sys, math
KNAME = "standalone__tree_speculative_verify_tree_attention_over_candidate_token_tree__sampling_kernel"

HEADER = """; Kernarg layout for this problem (72 bytes, ptrs only, base s[0:1]):
"""

def f2u(x):
    import struct
    return struct.unpack("<I", struct.pack("<f", x))[0]

class Gen:
    def __init__(self, NTP=(7,7,7,7), NTC=(9,9,9,9), flags="nt", stamps=False, prodbit=1, pairmap=0, treerole=1):
        self.o = []
        self.NTP, self.NTC, self.flags, self.stamps = NTP, NTC, flags, stamps
        self.prodbit, self.pairmap, self.treerole = prodbit, pairmap, treerole
        assert sum(NTP)+sum(NTC) == 64
        for nt in (NTP, NTC):
            assert list(nt) == sorted(nt, reverse=True) and nt[0]-nt[-1] <= 1 and nt[-1] >= 2
    def A(self, s): self.o.append("  "+s)
    def L(self, s): self.o.append(s+":")
    def C(self, s): self.o.append("  ; "+s)

    vKa, vKb, vV, vLane = 1, 2, 3, 0
    mR = (4, 5); mC = (6, 7); lS = (8, 9); fS = (10, 11)
    T0 = 12
    S0 = 20
    P0 = 36
    VT = 44
    O0 = 60
    KA, VA, KB, VB = 124, 156, 188, 220
    def S(self, t, qh, r=0): return self.S0 + (t*2+qh)*4 + r
    def P(self, qh, k=0): return self.P0 + qh*4 + k
    def O(self, i, qh, r=0): return self.O0 + (i*2+qh)*4 + r
    @staticmethod
    def v4(r): return f"v[{r}:{r+3}]"
    @staticmethod
    def v2(r): return f"v[{r}:{r+1}]"
    def Q(self, qh, s): r = (qh*4+s)*4; return f"a[{r}:{r+3}]"
    sK, sV, sQ, sKT, sVT, sM, sO, sW, sD = "s[24:27]", "s[28:31]", "s[32:35]", "s[36:39]", "s[40:43]", "s[44:47]", "s[48:51]", "s[52:55]", "s[56:59]"
    sPair, sRole, sWave, sNT, sRem, sA, sB, sPos, sNt, sNTmin, sKst, sT = ["s%d" % i for i in range(60, 72)]
    sC, sSelLo, sSelHi = "s72", "s73", "s74"
    sEx = "s[76:77]"
    nstamp = 0
    def stamp(self):
        if self.stamps:
            r = 80 + 2*self.nstamp
            self.A(f"s_memrealtime s[{r}:{r+1}]")
            self.nstamp += 1

    def loadK(self, Kb):
        for blk, so in ((0, self.sA), (1, self.sB)):
            for x in range(4):
                va = self.vKa if x % 2 == 0 else self.vKb
                off = 128*(x//2)
                self.A(f"buffer_load_dwordx4 {self.v4(Kb+(blk*4+x)*4)}, v{va}, {self.sK}, {so} offen offset:{off} {self.flags}")
    def loadV(self, Vb):
        for j in range(8):
            so = self.sA if j < 4 else self.sB
            self.A(f"buffer_load_dwordx4 {self.v4(Vb+j*4)}, v{self.vV}, {self.sV}, {so} offen offset:{(j%4)*1024} {self.flags}")
    def nexttile(self):
        A = self.A
        A(f"s_add_u32 {self.sPos}, {self.sPos}, 0x8000")
        A(f"s_add_u32 {self.sNt}, {self.sNt}, 1")
        A(f"s_cmp_eq_u32 {self.sNt}, {self.sNTmin}")
        A(f"s_cselect_b32 {self.sT}, {self.sKst}, 0x4000")
        A(f"s_cmp_lt_u32 {self.sNt}, {self.sNT}")
        A(f"s_cselect_b32 {self.sA}, {self.sPos}, 0x40000000")
        A(f"s_add_u32 {self.sB}, {self.sA}, {self.sT}")

    def xlane(self, a, b, op):
        A = self.A
        A("s_nop 1")
        A(f"v_permlane32_swap_b32 v{a}, v{b}")
        A(f"{op} v{a}, v{a}, v{b}")
        A(f"v_mov_b32 v{b}, v{a}")
        A("s_nop 1")
        A(f"v_permlane16_swap_b32 v{a}, v{b}")
        A(f"{op} v{a}, v{a}, v{b}")
        A(f"v_mov_b32 v{b}, v{a}")
        A("s_nop 1")
        A(f"v_permlane32_swap_b32 v{a}, v{b}")

    def tile(self, Kb, Vb):
        A = self.A
        X = lambda blk, x, c=0: Kb + (blk*4+x)*4 + c
        A("s_waitcnt vmcnt(24)")
        A(f"s_mov_b64 exec, {self.sEx}")
        for blk in range(2):
            for x in (0, 2):
                for c in range(4):
                    A(f"v_swap_b32 v{X(blk,x,c)}, v{X(blk,x+1,c)}")
        A("s_mov_b64 exec, -1")
        for blk in range(2):
            for x in (1, 3):
                for c in range(4):
                    r = X(blk, x, c)
                    A(f"v_mov_b32_dpp v{r}, v{r} row_ror:8 row_mask:0xf bank_mask:0xf")
        for si, s in enumerate((0, 2, 1, 3)):
            for t in range(2):
                for qh in range(2):
                    c = "0" if si == 0 else self.v4(self.S(t, qh))
                    A(f"v_mfma_f32_16x16x32_bf16 {self.v4(self.S(t,qh))}, {self.v4(X(t,s))}, {self.Q(qh,s)}, {c}")
        self.nexttile()
        self.loadK(Kb)
        ta, tb = self.T0, self.T0+1
        for qh, tr in ((0, ta), (1, tb)):
            S = lambda t, r: self.S(t, qh, r)
            A(f"v_max3_f32 v{tr}, v{S(0,0)}, v{S(0,1)}, v{S(0,2)}")
            A(f"v_max3_f32 v{tr}, v{tr}, v{S(0,3)}, v{S(1,0)}")
            A(f"v_max3_f32 v{tr}, v{tr}, v{S(1,1)}, v{S(1,2)}")
            A(f"v_max3_f32 v{tr}, v{tr}, v{S(1,3)}, v{self.mR[qh]}")
        self.xlane(ta, tb, "v_max_f32")
        for qh, tr in ((0, ta), (1, tb)):
            A(f"v_mov_b32 v{self.mR[qh]}, v{tr}")
            A(f"v_mul_f32 v{tr}, {self.sC}, v{tr}")
            A(f"v_sub_f32 v{self.fS[qh]}, v{self.mC[qh]}, v{tr}")
            A(f"v_mov_b32 v{self.mC[qh]}, v{tr}")
            A(f"v_exp_f32 v{self.fS[qh]}, v{self.fS[qh]}")
        for qh in range(2):
            for t in range(2):
                for r in range(4):
                    s = self.S(t, qh, r)
                    A(f"v_fma_f32 v{s}, v{s}, {self.sC}, -v{self.mC[qh]}")
        for qh in range(2):
            for t in range(2):
                for r in range(4):
                    s = self.S(t, qh, r)
                    A(f"v_exp_f32 v{s}, v{s}")
        for qh in range(2):
            A(f"v_mul_f32 v{self.lS[qh]}, v{self.lS[qh]}, v{self.fS[qh]}")
        for t in range(2):
            for r in range(4):
                for qh in range(2):
                    A(f"v_add_f32 v{self.lS[qh]}, v{self.lS[qh]}, v{self.S(t,qh,r)}")
        for qh in range(2):
            for t in range(2):
                for h in range(2):
                    A(f"v_cvt_pk_bf16_f32 v{self.P(qh,t*2+h)}, v{self.S(t,qh,2*h)}, v{self.S(t,qh,2*h+1)}")
        for i in range(8):
            for qh in range(2):
                for r in range(4):
                    o = self.O(i, qh, r)
                    A(f"v_mul_f32 v{o}, v{o}, v{self.fS[qh]}")
        A("s_waitcnt vmcnt(24)")
        def perms(i):
            T = self.VT + (i % 4)*4
            sel = self.sSelLo if i % 2 == 0 else self.sSelHi
            for k in range(4):
                A(f"v_perm_b32 v{T+k}, v{Vb+(2*k+1)*4+i//2}, v{Vb+(2*k)*4+i//2}, {sel}")
        perms(0); perms(1)
        for i in range(8):
            T = self.VT + (i % 4)*4
            for qh in range(2):
                A(f"v_mfma_f32_16x16x32_bf16 {self.v4(self.O(i,qh))}, {self.v4(T)}, {self.v4(self.P(qh))}, {self.v4(self.O(i,qh))}")
            if i+2 < 8: perms(i+2)
        self.loadV(Vb)

    def srd(self, d, lo, hi, add, nbytes):
        A = self.A
        if add is None:
            A(f"s_mov_b32 s{d}, s{lo}"); A(f"s_mov_b32 s{d+1}, s{hi}")
        else:
            A(f"s_add_u32 s{d}, s{lo}, {add}"); A(f"s_addc_u32 s{d+1}, s{hi}, 0")
        A(f"s_mov_b32 s{d+2}, {nbytes}")
        A(f"s_mov_b32 s{d+3}, 0x20000")

    def gen(self):
        A, L, C = self.A, self.L, self.C
        LDS = 65536 + 4096
        self.o.append(HEADER + f"; @launch grid=(256,1,1) block=(256,1,1) lds={LDS}")
        self.o.append('.amdgcn_target "amdgcn-amd-amdhsa--gfx950"')
        self.o.append(".text"); self.o.append(f".globl {KNAME}"); self.o.append(".p2align 8")
        self.o.append(f".type {KNAME},@function"); L(KNAME)
        self.stamp()
        A("s_load_dwordx16 s[4:19], s[0:1], 0")
        A("s_load_dwordx2 s[20:21], s[0:1], 64")
        A("s_cmp_ge_u32 s2, 256")
        A("s_cbranch_scc1 L_end")
        A("v_lshrrev_b32 v4, 6, v0")
        A("v_and_b32 v0, 63, v0")
        if self.pairmap == 0:
            A(f"s_lshr_b32 {self.sPair}, s2, 1")
            A(f"s_and_b32 {self.sRole}, s2, 1")
        elif self.pairmap == 1:
            A(f"s_lshr_b32 {self.sPair}, s2, 4"); A(f"s_lshl_b32 {self.sPair}, {self.sPair}, 3")
            A(f"s_and_b32 {self.sRole}, s2, 7"); A(f"s_add_u32 {self.sPair}, {self.sPair}, {self.sRole}")
            A(f"s_bfe_u32 {self.sRole}, s2, 0x10003")
        if self.prodbit == 0:
            A(f"s_xor_b32 {self.sRole}, {self.sRole}, 1")
        A(f"v_readfirstlane_b32 {self.sWave}, v4")
        C("K lane offsets: rho=l%16, g=l/16, rho'=rho%8, hi=rho/8; key(rho)=4*(rho%4)+rho/4")
        A("v_and_b32 v1, 3, v0"); A("v_lshlrev_b32 v1, 10, v1")
        A("v_bfe_u32 v5, v0, 2, 1"); A("v_lshl_add_u32 v1, v5, 8, v1")
        A("v_lshrrev_b32 v5, 4, v0"); A("v_lshl_add_u32 v1, v5, 4, v1")
        A("v_bfe_u32 v5, v0, 3, 1"); A("v_lshlrev_b32 v5, 6, v5")
        A("v_add_u32 v2, 0x240, v1"); A("v_sub_u32 v2, v2, v5")
        A("v_add_u32 v1, v1, v5")
        A("v_lshlrev_b32 v3, 4, v0")
        A("v_and_b32 v6, 15, v0"); A("v_lshlrev_b32 v6, 8, v6"); A("v_lshrrev_b32 v5, 4, v0"); A("v_lshl_add_u32 v6, v5, 4, v6")
        A("v_add_u32 v7, 0x1000, v6")
        PB = sum(self.NTP)*8192; CB = sum(self.NTC)*8192
        def kact(nt): return sum(1 for x in nt if x > nt[-1])
        A(f"s_cmp_eq_u32 {self.sRole}, 1")
        A(f"s_cselect_b32 {self.sNTmin}, {self.NTP[-1]}, {self.NTC[-1]}")
        A(f"s_cselect_b32 {self.sKst}, {kact(self.NTP)}, {kact(self.NTC)}")
        A(f"s_cselect_b32 s22, {CB}, 0")
        A(f"s_cselect_b32 s23, {sum(self.NTP)}, {sum(self.NTC)}")
        A(f"s_cmp_lt_u32 {self.sWave}, {self.sKst}")
        A(f"s_addc_u32 {self.sNT}, {self.sNTmin}, 0")
        A(f"s_lshl_b32 {self.sKst}, {self.sKst}, 12")
        A("s_lshl_b32 s23, s23, 13")
        A(f"s_lshl_b32 {self.sT}, {self.sPair}, 19")
        A(f"s_add_u32 s22, s22, {self.sT}")
        A(f"s_lshl_b32 {self.sPos}, {self.sWave}, 12")
        A(f"s_mov_b32 {self.sA}, {self.sPos}")
        A(f"s_add_u32 {self.sB}, {self.sA}, 0x4000")
        A(f"s_mov_b32 {self.sNt}, 0")
        A(f"s_lshl_b32 s3, {self.sPair}, 13")
        A("s_waitcnt lgkmcnt(0)")
        self.srd(24, 6, 7, "s22", "s23")
        self.loadK(self.KA)
        self.stamp()
        self.srd(32, 4, 5, "s3", 8192)
        for qh in range(2):
            for s in range(4):
                A(f"buffer_load_dwordx4 {self.Q(qh,s)}, v{6+qh}, {self.sQ}, 0 offen offset:{s*64}")
        self.srd(28, 8, 9, "s22", "s23")
        self.srd(48, 16, 17, "s3", 8192)
        A(f"s_lshl_b32 {self.sT}, {self.sPair}, 11")
        self.srd(36, 10, 11, self.sT, 2048)
        self.srd(40, 12, 13, self.sT, 2048)
        A(f"s_lshr_b32 {self.sT}, {self.sPair}, 3"); A(f"s_lshl_b32 {self.sT}, {self.sT}, 7")
        self.srd(44, 14, 15, self.sT, 128)
        A(f"s_mul_i32 {self.sT}, {self.sPair}, {4*(4096+512)}")
        self.srd(52, 20, 21, self.sT, 4*(4096+512))
        self.srd(56, 18, 19, None, 256)
        A(f"s_lshl_b32 s78, {self.sWave}, 1"); A(f"s_add_u32 s78, s78, {self.sRole}")
        A(f"s_cmp_eq_u32 s78, {self.treerole}")
        A("s_cbranch_scc0 L_notree1")
        C("tree loads: K rows key(rho)*256 + (4s+g)*16 ; V rows; mask")
        A("v_and_b32 v12, 3, v0"); A("v_lshlrev_b32 v12, 10, v12")
        A("v_bfe_u32 v5, v0, 2, 2"); A("v_lshl_add_u32 v12, v5, 8, v12")
        A("v_lshrrev_b32 v5, 4, v0"); A("v_lshl_add_u32 v12, v5, 4, v12")
        for s in range(4):
            A(f"buffer_load_dwordx4 {self.v4(self.O0+s*4)}, v12, {self.sKT}, 0 offen offset:{s*64}")
        for j in range(2):
            A(f"buffer_load_dwordx4 {self.v4(self.VT+8+j*4)}, v3, {self.sVT}, 0 offen offset:{j*1024}")
        A("v_and_b32 v13, 7, v0"); A("v_lshlrev_b32 v13, 4, v13"); A("v_lshl_add_u32 v13, v5, 1, v13")
        A(f"buffer_load_ushort v14, v13, {self.sM}, 0 offen")
        A(f"buffer_load_ushort v15, v13, {self.sM}, 0 offen offset:8")
        L("L_notree1")
        self.loadV(self.VA)
        self.nexttile()
        self.loadK(self.KB)
        self.loadV(self.VB)
        c = (128 ** -0.5) * math.log2(math.e)
        A(f"s_mov_b32 {self.sC}, 0x{f2u(c):08x}")
        A(f"s_mov_b32 {self.sSelLo}, 0x05040100")
        A(f"s_mov_b32 {self.sSelHi}, 0x07060302")
        A("s_mov_b32 s76, 0xff00ff00"); A("s_mov_b32 s77, 0xff00ff00")
        A(f"s_mov_b32 {self.sRem}, {self.sNT}")
        A(f"s_cmp_eq_u32 s78, {self.treerole}")
        A("s_cbranch_scc1 L_tree")
        for qh in range(2):
            A(f"v_mov_b32 v{self.mR[qh]}, 0x{f2u(-3.0e38):08x}")
            A(f"v_mov_b32 v{self.mC[qh]}, 0x{f2u(-3.0e38*c):08x}")
            A(f"v_mov_b32 v{self.lS[qh]}, 0")
        for r in range(64):
            A(f"v_mov_b32 v{self.O0+r}, 0")
        L("L_loop")
        self.tile(self.KA, self.VA)
        A(f"s_sub_u32 {self.sRem}, {self.sRem}, 1")
        A(f"s_cmp_eq_u32 {self.sRem}, 0")
        A("s_cbranch_scc1 L_done")
        self.tile(self.KB, self.VB)
        A(f"s_sub_u32 {self.sRem}, {self.sRem}, 1")
        A(f"s_cmp_lg_u32 {self.sRem}, 0")
        A("s_cbranch_scc1 L_loop")
        L("L_done")
        self.stamp()
        C("---- epilogue: cross-wave reduce through LDS")
        self.xlane(self.lS[0], self.lS[1], "v_add_f32")
        A(f"s_lshl_b32 {self.sT}, {self.sWave}, 14")
        A(f"v_lshl_add_u32 v12, v0, 3, {self.sT}")
        A(f"s_lshl_b32 {self.sT}, {self.sWave}, 10"); A(f"s_add_u32 {self.sT}, {self.sT}, 0x10000")
        A(f"v_lshl_add_u32 v13, v0, 3, {self.sT}")
        A(f"v_mov_b32 v14, v{self.mC[0]}"); A(f"v_mov_b32 v15, v{self.lS[0]}")
        A(f"v_mov_b32 v16, v{self.mC[1]}"); A(f"v_mov_b32 v17, v{self.lS[1]}")
        A("ds_write2st64_b64 v13, v[14:15], v[16:17] offset0:0 offset1:1")
        for i in range(8):
            for qh in range(2):
                o = self.O(i, qh)
                A(f"ds_write2st64_b64 v12, {self.v2(o)}, {self.v2(o+2)} offset0:{(qh*2)*8+i} offset1:{(qh*2+1)*8+i}")
        A(f"s_lshl_b32 {self.sT}, {self.sWave}, 12")
        A(f"v_lshl_add_u32 v12, v0, 3, {self.sT}")
        A(f"s_lshr_b32 {self.sT}, {self.sWave}, 1"); A(f"s_lshl_b32 {self.sT}, {self.sT}, 9"); A(f"s_add_u32 {self.sT}, {self.sT}, 0x10000")
        A(f"v_lshl_add_u32 v13, v0, 3, {self.sT}")
        A("s_waitcnt lgkmcnt(0)")
        A("s_barrier")
        ST = self.S0
        R = self.KA
        for s in range(4):
            A(f"ds_read_b64 {self.v2(ST+2*s)}, v13 offset:{s*1024}")
        A("s_waitcnt vmcnt(0)")
        for s in range(4):
            for i in range(8):
                A(f"ds_read_b64 {self.v2(R+(s*8+i)*2)}, v12 offset:{s*16384+i*512}")
        PP = self.KB
        A(f"s_mul_i32 s79, {self.sWave}, {4096+512}")
        A("v_lshlrev_b32 v18, 3, v0")
        A(f"s_lshr_b32 s3, {self.sPair}, 1"); A("s_lshl_b32 s3, s3, 2")
        A(f"s_and_b32 s22, {self.sPair}, 1"); A("s_lshl_b32 s22, s22, 4"); A("s_lshl_b32 s22, 1, s22")
        A(f"s_cmp_eq_u32 {self.sRole}, 1")
        A("s_cbranch_scc1 L_prod")
        C("consumer: wait for the producer's flag, fetch its partial")
        A("s_mov_b32 s23, 0x400000")
        L("L_spin")
        A(f"buffer_load_dword v19, off, {self.sD}, s3 sc1")
        A("s_waitcnt vmcnt(0)")
        A("v_readfirstlane_b32 s2, v19")
        A("s_and_b32 s2, s2, s22")
        A("s_cbranch_scc1 L_got")
        A("s_sub_u32 s23, s23, 1")
        A("s_cbranch_scc1 L_got")
        A("s_sleep 1")
        A("s_branch L_spin")
        L("L_got")
        for k in range(4):
            A(f"buffer_load_dwordx4 {self.v4(PP+4*k)}, v3, {self.sW}, s79 offen offset:{k*1024} sc1")
        A("s_add_u32 s79, s79, 4096")
        A(f"buffer_load_dwordx2 {self.v2(ST+8)}, v18, {self.sW}, s79 offen sc1")
        self.stamp()
        A("s_waitcnt vmcnt(0) lgkmcnt(0)")
        M = 14
        A(f"v_max3_f32 v{M}, v{ST}, v{ST+2}, v{ST+4}")
        A(f"v_max3_f32 v{M}, v{M}, v{ST+6}, v{ST+8}")
        for s in range(5):
            A(f"v_sub_f32 v{ST+2*s}, v{ST+2*s}, v{M}")
        for s in range(5):
            A(f"v_exp_f32 v{ST+2*s}, v{ST+2*s}")
        A("s_nop 0")
        A(f"v_mul_f32 v15, v{ST}, v{ST+1}")
        for s in range(1, 5):
            A(f"v_fmac_f32 v15, v{ST+2*s}, v{ST+2*s+1}")
        A("v_rcp_f32 v15, v15")
        A("s_nop 0")
        for s in range(5):
            A(f"v_mul_f32 v{ST+2*s}, v{ST+2*s}, v15")
        for e in range(16):
            A(f"v_mul_f32 v{PP+e}, v{PP+e}, v{ST+8}")
        for s in range(4):
            for e in range(16):
                A(f"v_fmac_f32 v{PP+e}, v{R+s*16+e}, v{ST+2*s}")
        OUT = self.VB
        for rr in range(2):
            for k in range(4):
                A(f"v_cvt_pk_bf16_f32 v{OUT+rr*4+k}, v{PP+(2*k)*2+rr}, v{PP+(2*k+1)*2+rr}")
        A("v_and_b32 v12, 15, v0"); A("v_lshlrev_b32 v12, 8, v12"); A("v_lshrrev_b32 v13, 4, v0"); A("v_lshl_add_u32 v12, v13, 6, v12")
        A(f"s_lshr_b32 {self.sT}, {self.sWave}, 1"); A(f"s_lshl_b32 {self.sT}, {self.sT}, 12")
        A(f"s_and_b32 s2, {self.sWave}, 1"); A("s_lshl_b32 s2, s2, 5"); A(f"s_add_u32 {self.sT}, {self.sT}, s2")
        for rr in range(2):
            A(f"buffer_store_dwordx4 {self.v4(OUT+rr*4)}, v12, {self.sO}, {self.sT} offen offset:{rr*16}")
        A("s_branch L_fin")
        L("L_prod")
        A("s_waitcnt lgkmcnt(0)")
        A(f"v_max3_f32 v{M}, v{ST}, v{ST+2}, v{ST+4}")
        A(f"v_max_f32 v{M}, v{M}, v{ST+6}")
        for s in range(4):
            A(f"v_sub_f32 v{ST+2*s}, v{ST+2*s}, v{M}")
        for s in range(4):
            A(f"v_exp_f32 v{ST+2*s}, v{ST+2*s}")
        A("s_nop 0")
        A(f"v_mul_f32 v15, v{ST}, v{ST+1}")
        for s in range(1, 4):
            A(f"v_fmac_f32 v15, v{ST+2*s}, v{ST+2*s+1}")
        for e in range(16):
            A(f"v_mul_f32 v{PP+e}, v{R+e}, v{ST}")
        for s in range(1, 4):
            for e in range(16):
                A(f"v_fmac_f32 v{PP+e}, v{R+s*16+e}, v{ST+2*s}")
        for k in range(4):
            A(f"buffer_store_dwordx4 {self.v4(PP+4*k)}, v3, {self.sW}, s79 offen offset:{k*1024} sc1")
        A("s_add_u32 s79, s79, 4096")
        A(f"buffer_store_dwordx2 v[14:15], v18, {self.sW}, s79 offen sc1")
        if self.stamps: self.nstamp -= 1
        self.stamp()
        A("s_waitcnt vmcnt(0)")
        A("s_barrier")
        A(f"s_cmp_eq_u32 {self.sWave}, 0")
        A("s_cbranch_scc0 L_fin")
        A("v_mov_b32 v19, s22")
        A("s_mov_b64 exec, 1")
        A(f"buffer_atomic_or v19, off, {self.sD}, s3 sc1")
        A("s_mov_b64 exec, -1")
        L("L_fin")
        if self.stamps:
            A("s_waitcnt vmcnt(0)")
            self.stamp()
            A("s_getreg_b32 s2, hwreg(HW_REG_XCC_ID)")
            A("s_waitcnt lgkmcnt(0)")
            A("v_mov_b32 v10, 0")
            for k in range(self.nstamp):
                A(f"v_writelane_b32 v10, s{80+2*k}, {k}")
            A("v_writelane_b32 v10, s2, 14")
            A(f"v_writelane_b32 v10, {self.sRole}, 15")
            A(f"s_lshl_b32 s2, {self.sPair}, 1"); A(f"s_add_u32 s2, s2, {self.sRole}"); A("s_lshl_b32 s2, s2, 2"); A(f"s_add_u32 s2, s2, {self.sWave}")
            A("s_lshl_b32 s2, s2, 6"); A("s_add_u32 s2, s2, 0x800000")
            self.srd(52, 20, 21, None, 0x1000000)
            A("v_lshlrev_b32 v11, 2, v0")
            A("v_cmp_gt_u32 vcc, 16, v0")
            A("s_and_saveexec_b64 s[22:23], vcc")
            A(f"buffer_store_dword v10, v11, {self.sW}, s2 offen")
        L("L_end")
        A("s_endpgm")
        L("L_tree")
        A("s_waitcnt vmcnt(24)")
        for s in range(4):
            for qh in range(2):
                cc = "0" if s == 0 else self.v4(self.S(0, qh))
                A(f"v_mfma_f32_16x16x32_bf16 {self.v4(self.S(0,qh))}, {self.v4(self.O0+s*4)}, {self.Q(qh,s)}, {cc}")
        big = -1.0e9 * math.sqrt(128.0)
        A("v_lshlrev_b32 v14, 16, v14"); A("v_lshlrev_b32 v15, 16, v15")
        A("v_sub_f32 v14, 1.0, v14"); A("v_sub_f32 v15, 1.0, v15")
        A(f"v_mul_f32 v14, 0x{f2u(big):08x}, v14"); A(f"v_mul_f32 v15, 0x{f2u(big):08x}, v15")
        for k in (1, 2, 3, 5, 6, 7):
            A(f"v_mov_b32 v{self.VT+k}, 0"); A(f"v_mov_b32 v{self.P0+k}, 0")
        for qh in range(2):
            A(f"v_add_f32 v{self.S(0,qh,0)}, v{self.S(0,qh,0)}, v14")
            A(f"v_add_f32 v{self.S(0,qh,1)}, v{self.S(0,qh,1)}, v15")
            A(f"v_max_f32 v{self.mR[qh]}, v{self.S(0,qh,0)}, v{self.S(0,qh,1)}")
        self.xlane(self.mR[0], self.mR[1], "v_max_f32")
        for qh in range(2):
            A(f"v_mul_f32 v{self.mC[qh]}, {self.sC}, v{self.mR[qh]}")
        for qh in range(2):
            for r in range(2):
                s = self.S(0, qh, r)
                A(f"v_fma_f32 v{s}, v{s}, {self.sC}, -v{self.mC[qh]}")
        for qh in range(2):
            for r in range(2):
                s = self.S(0, qh, r)
                A(f"v_exp_f32 v{s}, v{s}")
        A("s_nop 0")
        for qh in range(2):
            A(f"v_add_f32 v{self.lS[qh]}, v{self.S(0,qh,0)}, v{self.S(0,qh,1)}")
            A(f"v_cvt_pk_bf16_f32 v{self.P(qh)}, v{self.S(0,qh,0)}, v{self.S(0,qh,1)}")
        for i in range(8):
            T = self.VT + (i % 2)*4
            sel = self.sSelLo if i % 2 == 0 else self.sSelHi
            A(f"v_perm_b32 v{T}, v{self.VT+12+i//2}, v{self.VT+8+i//2}, {sel}")
            A("s_nop 1")
            for qh in range(2):
                A(f"v_mfma_f32_16x16x32_bf16 {self.v4(self.O(i,qh))}, {self.v4(T)}, {self.v4(self.P(qh))}, 0")
        A("s_branch L_loop")
        self.o.append('.section .rodata,"a"'); self.o.append(".p2align 6"); self.o.append(f".amdhsa_kernel {KNAME}")
        for d in ("next_free_vgpr 320", "next_free_sgpr 102", "accum_offset 256", "group_segment_fixed_size 0", "kernarg_size 72",
                  "user_sgpr_count 2", "user_sgpr_kernarg_segment_ptr 1", "system_sgpr_workgroup_id_x 1"):
            self.o.append("  .amdhsa_"+d)
        self.o.append(".end_amdhsa_kernel")
        return "\n".join(self.o)+"\n"

if __name__ == "__main__":
    out = sys.argv[1]
    kw = eval("dict(" + (sys.argv[2] if len(sys.argv) > 2 else "") + ")")
    open(out, "w").write(Gen(**kw).gen())
```

```python
import sys, math
KNAME = "standalone__tree_speculative_verify_tree_attention_over_candidate_token_tree__sampling_kernel"

HEADER = """; Kernarg layout for this problem (72 bytes, ptrs only, base s[0:1]):
"""

def f2u(x):
    import struct
    return struct.unpack("<I", struct.pack("<f", x))[0]

class Gen:
    def __init__(self, NTP=(7,7,7,7), NTC=(9,9,9,9), flags="nt", stamps=False, prodbit=1, pairmap=0, treerole=1, padto=0):
        self.padto=padto
        self.o = []
        self.NTP, self.NTC, self.flags, self.stamps = NTP, NTC, flags, stamps
        self.prodbit, self.pairmap, self.treerole = prodbit, pairmap, treerole
        assert sum(NTP)+sum(NTC) == 64
        for nt in (NTP, NTC):
            assert list(nt) == sorted(nt, reverse=True) and nt[0]-nt[-1] <= 1 and nt[-1] >= 2
    def A(self, s): self.o.append("  "+s)
    def L(self, s): self.o.append(s+":")
    def C(self, s): self.o.append("  ; "+s)

    vKa, vKb, vV, vLane = 1, 2, 3, 0
    mR = (4, 5); mC = (6, 7); lS = (8, 9); fS = (10, 11)
    T0 = 12
    S0 = 20
    P0 = 36
    VT = 44
    O0 = 60
    KA, VA, KB, VB = 124, 156, 188, 220
    def S(self, t, qh, r=0): return self.S0 + (t*2+qh)*4 + r
    def P(self, qh, k=0): return self.P0 + qh*4 + k
    def O(self, i, qh, r=0): return self.O0 + (i*2+qh)*4 + r
    @staticmethod
    def v4(r): return f"v[{r}:{r+3}]"
    @staticmethod
    def v2(r): return f"v[{r}:{r+1}]"
    def Q(self, qh, s): r = (qh*4+s)*4; return f"a[{r}:{r+3}]"
    sK, sV, sQ, sKT, sVT, sM, sO, sW, sD = "s[24:27]", "s[28:31]", "s[32:35]", "s[36:39]", "s[40:43]", "s[44:47]", "s[48:51]", "s[52:55]", "s[56:59]"
    sPair, sRole, sWave, sNT, sRem, sA, sB, sPos, sNt, sNTmin, sKst, sT = ["s%d" % i for i in range(60, 72)]
    sC, sSelLo, sSelHi = "s72", "s73", "s74"
    sEx = "s[76:77]"
    nstamp = 0
    def stamp(self):
        if self.stamps:
            r = 80 + 2*self.nstamp
            self.A(f"s_memrealtime s[{r}:{r+1}]")
            self.nstamp += 1

    def loadK(self, Kb):
        for blk, so in ((0, self.sA), (1, self.sB)):
            for x in range(4):
                va = self.vKa if x % 2 == 0 else self.vKb
                off = 128*(x//2)
                self.A(f"buffer_load_dwordx4 {self.v4(Kb+(blk*4+x)*4)}, v{va}, {self.sK}, {so} offen offset:{off} {self.flags}")
    def loadV(self, Vb):
        for j in range(8):
            so = self.sA if j < 4 else self.sB
            self.A(f"buffer_load_dwordx4 {self.v4(Vb+j*4)}, v{self.vV}, {self.sV}, {so} offen offset:{(j%4)*1024} {self.flags}")
    def nexttile(self):
        A = self.A
        A(f"s_add_u32 {self.sPos}, {self.sPos}, 0x8000")
        A(f"s_add_u32 {self.sNt}, {self.sNt}, 1")
        A(f"s_cmp_eq_u32 {self.sNt}, {self.sNTmin}")
        A(f"s_cselect_b32 {self.sT}, {self.sKst}, 0x4000")
        A(f"s_cmp_lt_u32 {self.sNt}, {self.sNT}")
        A(f"s_cselect_b32 {self.sA}, {self.sPos}, 0x40000000")
        A(f"s_add_u32 {self.sB}, {self.sA}, {self.sT}")

    def xlane(self, a, b, op):
        A = self.A
        A("s_nop 1")
        A(f"v_permlane32_swap_b32 v{a}, v{b}")
        A(f"{op} v{a}, v{a}, v{b}")
        A(f"v_mov_b32 v{b}, v{a}")
        A("s_nop 1")
        A(f"v_permlane16_swap_b32 v{a}, v{b}")
        A(f"{op} v{a}, v{a}, v{b}")
        A(f"v_mov_b32 v{b}, v{a}")
        A("s_nop 1")
        A(f"v_permlane32_swap_b32 v{a}, v{b}")

    def tile(self, Kb, Vb):
        A = self.A
        X = lambda blk, x, c=0: Kb + (blk*4+x)*4 + c
        A("s_waitcnt vmcnt(24)")
        A(f"s_mov_b64 exec, {self.sEx}")
        for blk in range(2):
            for x in (0, 2):
                for c in range(4):
                    A(f"v_swap_b32 v{X(blk,x,c)}, v{X(blk,x+1,c)}")
        A("s_mov_b64 exec, -1")
        for blk in range(2):
            for x in (1, 3):
                for c in range(4):
                    r = X(blk, x, c)
                    A(f"v_mov_b32_dpp v{r}, v{r} row_ror:8 row_mask:0xf bank_mask:0xf")
        for si, s in enumerate((0, 2, 1, 3)):
            for t in range(2):
                for qh in range(2):
                    c = "0" if si == 0 else self.v4(self.S(t, qh))
                    A(f"v_mfma_f32_16x16x32_bf16 {self.v4(self.S(t,qh))}, {self.v4(X(t,s))}, {self.Q(qh,s)}, {c}")
        self.nexttile()
        self.loadK(Kb)
        ta, tb = self.T0, self.T0+1
        for qh, tr in ((0, ta), (1, tb)):
            S = lambda t, r: self.S(t, qh, r)
            A(f"v_max3_f32 v{tr}, v{S(0,0)}, v{S(0,1)}, v{S(0,2)}")
            A(f"v_max3_f32 v{tr}, v{tr}, v{S(0,3)}, v{S(1,0)}")
            A(f"v_max3_f32 v{tr}, v{tr}, v{S(1,1)}, v{S(1,2)}")
            A(f"v_max3_f32 v{tr}, v{tr}, v{S(1,3)}, v{self.mR[qh]}")
        self.xlane(ta, tb, "v_max_f32")
        for qh, tr in ((0, ta), (1, tb)):
            A(f"v_mov_b32 v{self.mR[qh]}, v{tr}")
            A(f"v_mul_f32 v{tr}, {self.sC}, v{tr}")
            A(f"v_sub_f32 v{self.fS[qh]}, v{self.mC[qh]}, v{tr}")
            A(f"v_mov_b32 v{self.mC[qh]}, v{tr}")
            A(f"v_exp_f32 v{self.fS[qh]}, v{self.fS[qh]}")
        for qh in range(2):
            for t in range(2):
                for r in range(4):
                    s = self.S(t, qh, r)
                    A(f"v_fma_f32 v{s}, v{s}, {self.sC}, -v{self.mC[qh]}")
        for qh in range(2):
            for t in range(2):
                for r in range(4):
                    s = self.S(t, qh, r)
                    A(f"v_exp_f32 v{s}, v{s}")
        for qh in range(2):
            A(f"v_mul_f32 v{self.lS[qh]}, v{self.lS[qh]}, v{self.fS[qh]}")
        for t in range(2):
            for r in range(4):
                for qh in range(2):
                    A(f"v_add_f32 v{self.lS[qh]}, v{self.lS[qh]}, v{self.S(t,qh,r)}")
        for qh in range(2):
            for t in range(2):
                for h in range(2):
                    A(f"v_cvt_pk_bf16_f32 v{self.P(qh,t*2+h)}, v{self.S(t,qh,2*h)}, v{self.S(t,qh,2*h+1)}")
        for i in range(8):
            for qh in range(2):
                for r in range(4):
                    o = self.O(i, qh, r)
                    A(f"v_mul_f32 v{o}, v{o}, v{self.fS[qh]}")
        A("s_waitcnt vmcnt(24)")
        def perms(i):
            T = self.VT + (i % 4)*4
            sel = self.sSelLo if i % 2 == 0 else self.sSelHi
            for k in range(4):
                A(f"v_perm_b32 v{T+k}, v{Vb+(2*k+1)*4+i//2}, v{Vb+(2*k)*4+i//2}, {sel}")
        perms(0); perms(1)
        for i in range(8):
            T = self.VT + (i % 4)*4
            for qh in range(2):
                A(f"v_mfma_f32_16x16x32_bf16 {self.v4(self.O(i,qh))}, {self.v4(T)}, {self.v4(self.P(qh))}, {self.v4(self.O(i,qh))}")
            if i+2 < 8: perms(i+2)
        self.loadV(Vb)

    def srd(self, d, lo, hi, add, nbytes):
        A = self.A
        if add is None:
            A(f"s_mov_b32 s{d}, s{lo}"); A(f"s_mov_b32 s{d+1}, s{hi}")
        else:
            A(f"s_add_u32 s{d}, s{lo}, {add}"); A(f"s_addc_u32 s{d+1}, s{hi}, 0")
        A(f"s_mov_b32 s{d+2}, {nbytes}")
        A(f"s_mov_b32 s{d+3}, 0x20000")

    def gen(self):
        A, L, C = self.A, self.L, self.C
        LDS = 65536 + 4096
        self.o.append(HEADER + f"; @launch grid=(256,1,1) block=(256,1,1) lds={LDS}")
        self.o.append('.amdgcn_target "amdgcn-amd-amdhsa--gfx950"')
        self.o.append(".text"); self.o.append(f".globl {KNAME}"); self.o.append(".p2align 8")
        self.o.append(f".type {KNAME},@function"); L(KNAME)
        self.stamp()
        if self.padto: A("s_memrealtime s[96:97]")
        A("s_load_dwordx16 s[4:19], s[0:1], 0")
        A("s_load_dwordx2 s[20:21], s[0:1], 64")
        A("s_cmp_ge_u32 s2, 256")
        A("s_cbranch_scc1 L_end")
        A("v_lshrrev_b32 v4, 6, v0")
        A("v_and_b32 v0, 63, v0")
        if self.pairmap == 0:
            A(f"s_lshr_b32 {self.sPair}, s2, 1")
            A(f"s_and_b32 {self.sRole}, s2, 1")
        elif self.pairmap == 1:
            A(f"s_lshr_b32 {self.sPair}, s2, 4"); A(f"s_lshl_b32 {self.sPair}, {self.sPair}, 3")
            A(f"s_and_b32 {self.sRole}, s2, 7"); A(f"s_add_u32 {self.sPair}, {self.sPair}, {self.sRole}")
            A(f"s_bfe_u32 {self.sRole}, s2, 0x10003")
        if self.prodbit == 0:
            A(f"s_xor_b32 {self.sRole}, {self.sRole}, 1")
        A(f"v_readfirstlane_b32 {self.sWave}, v4")
        C("K lane offsets: rho=l%16, g=l/16, rho'=rho%8, hi=rho/8; key(rho)=4*(rho%4)+rho/4")
        A("v_and_b32 v1, 3, v0"); A("v_lshlrev_b32 v1, 10, v1")
        A("v_bfe_u32 v5, v0, 2, 1"); A("v_lshl_add_u32 v1, v5, 8, v1")
        A("v_lshrrev_b32 v5, 4, v0"); A("v_lshl_add_u32 v1, v5, 4, v1")
        A("v_bfe_u32 v5, v0, 3, 1"); A("v_lshlrev_b32 v5, 6, v5")
        A("v_add_u32 v2, 0x240, v1"); A("v_sub_u32 v2, v2, v5")
        A("v_add_u32 v1, v1, v5")
        A("v_lshlrev_b32 v3, 4, v0")
        A("v_and_b32 v6, 15, v0"); A("v_lshlrev_b32 v6, 8, v6"); A("v_lshrrev_b32 v5, 4, v0"); A("v_lshl_add_u32 v6, v5, 4, v6")
        A("v_add_u32 v7, 0x1000, v6")
        PB = sum(self.NTP)*8192; CB = sum(self.NTC)*8192
        def kact(nt): return sum(1 for x in nt if x > nt[-1])
        A(f"s_cmp_eq_u32 {self.sRole}, 1")
        A(f"s_cselect_b32 {self.sNTmin}, {self.NTP[-1]}, {self.NTC[-1]}")
        A(f"s_cselect_b32 {self.sKst}, {kact(self.NTP)}, {kact(self.NTC)}")
        A(f"s_cselect_b32 s22, {CB}, 0")
        A(f"s_cselect_b32 s23, {sum(self.NTP)}, {sum(self.NTC)}")
        A(f"s_cmp_lt_u32 {self.sWave}, {self.sKst}")
        A(f"s_addc_u32 {self.sNT}, {self.sNTmin}, 0")
        A(f"s_lshl_b32 {self.sKst}, {self.sKst}, 12")
        A("s_lshl_b32 s23, s23, 13")
        A(f"s_lshl_b32 {self.sT}, {self.sPair}, 19")
        A(f"s_add_u32 s22, s22, {self.sT}")
        A(f"s_lshl_b32 {self.sPos}, {self.sWave}, 12")
        A(f"s_mov_b32 {self.sA}, {self.sPos}")
        A(f"s_add_u32 {self.sB}, {self.sA}, 0x4000")
        A(f"s_mov_b32 {self.sNt}, 0")
        A(f"s_lshl_b32 s3, {self.sPair}, 13")
        A("s_waitcnt lgkmcnt(0)")
        self.srd(24, 6, 7, "s22", "s23")
        self.loadK(self.KA)
        self.stamp()
        self.srd(32, 4, 5, "s3", 8192)
        for qh in range(2):
            for s in range(4):
                A(f"buffer_load_dwordx4 {self.Q(qh,s)}, v{6+qh}, {self.sQ}, 0 offen offset:{s*64}")
        self.srd(28, 8, 9, "s22", "s23")
        self.srd(48, 16, 17, "s3", 8192)
        A(f"s_lshl_b32 {self.sT}, {self.sPair}, 11")
        self.srd(36, 10, 11, self.sT, 2048)
        self.srd(40, 12, 13, self.sT, 2048)
        A(f"s_lshr_b32 {self.sT}, {self.sPair}, 3"); A(f"s_lshl_b32 {self.sT}, {self.sT}, 7")
        self.srd(44, 14, 15, self.sT, 128)
        A(f"s_mul_i32 {self.sT}, {self.sPair}, {4*(4096+512)}")
        self.srd(52, 20, 21, self.sT, 4*(4096+512))
        self.srd(56, 18, 19, None, 256)
        A(f"s_lshl_b32 s78, {self.sWave}, 1"); A(f"s_add_u32 s78, s78, {self.sRole}")
        A(f"s_cmp_eq_u32 s78, {self.treerole}")
        A("s_cbranch_scc0 L_notree1")
        C("tree loads: K rows key(rho)*256 + (4s+g)*16 ; V rows; mask")
        A("v_and_b32 v12, 3, v0"); A("v_lshlrev_b32 v12, 10, v12")
        A("v_bfe_u32 v5, v0, 2, 2"); A("v_lshl_add_u32 v12, v5, 8, v12")
        A("v_lshrrev_b32 v5, 4, v0"); A("v_lshl_add_u32 v12, v5, 4, v12")
        for s in range(4):
            A(f"buffer_load_dwordx4 {self.v4(self.O0+s*4)}, v12, {self.sKT}, 0 offen offset:{s*64}")
        for j in range(2):
            A(f"buffer_load_dwordx4 {self.v4(self.VT+8+j*4)}, v3, {self.sVT}, 0 offen offset:{j*1024}")
        A("v_and_b32 v13, 7, v0"); A("v_lshlrev_b32 v13, 4, v13"); A("v_lshl_add_u32 v13, v5, 1, v13")
        A(f"buffer_load_ushort v14, v13, {self.sM}, 0 offen")
        A(f"buffer_load_ushort v15, v13, {self.sM}, 0 offen offset:8")
        L("L_notree1")
        self.loadV(self.VA)
        self.nexttile()
        self.loadK(self.KB)
        self.loadV(self.VB)
        c = (128 ** -0.5) * math.log2(math.e)
        A(f"s_mov_b32 {self.sC}, 0x{f2u(c):08x}")
        A(f"s_mov_b32 {self.sSelLo}, 0x05040100")
        A(f"s_mov_b32 {self.sSelHi}, 0x07060302")
        A("s_mov_b32 s76, 0xff00ff00"); A("s_mov_b32 s77, 0xff00ff00")
        A(f"s_mov_b32 {self.sRem}, {self.sNT}")
        A(f"s_cmp_eq_u32 s78, {self.treerole}")
        A("s_cbranch_scc1 L_tree")
        for qh in range(2):
            A(f"v_mov_b32 v{self.mR[qh]}, 0x{f2u(-3.0e38):08x}")
            A(f"v_mov_b32 v{self.mC[qh]}, 0x{f2u(-3.0e38*c):08x}")
            A(f"v_mov_b32 v{self.lS[qh]}, 0")
        for r in range(64):
            A(f"v_mov_b32 v{self.O0+r}, 0")
        L("L_loop")
        self.tile(self.KA, self.VA)
        A(f"s_sub_u32 {self.sRem}, {self.sRem}, 1")
        A(f"s_cmp_eq_u32 {self.sRem}, 0")
        A("s_cbranch_scc1 L_done")
        self.tile(self.KB, self.VB)
        A(f"s_sub_u32 {self.sRem}, {self.sRem}, 1")
        A(f"s_cmp_lg_u32 {self.sRem}, 0")
        A("s_cbranch_scc1 L_loop")
        L("L_done")
        self.stamp()
        C("---- epilogue: cross-wave reduce through LDS")
        self.xlane(self.lS[0], self.lS[1], "v_add_f32")
        A(f"s_lshl_b32 {self.sT}, {self.sWave}, 14")
        A(f"v_lshl_add_u32 v12, v0, 3, {self.sT}")
        A(f"s_lshl_b32 {self.sT}, {self.sWave}, 10"); A(f"s_add_u32 {self.sT}, {self.sT}, 0x10000")
        A(f"v_lshl_add_u32 v13, v0, 3, {self.sT}")
        A(f"v_mov_b32 v14, v{self.mC[0]}"); A(f"v_mov_b32 v15, v{self.lS[0]}")
        A(f"v_mov_b32 v16, v{self.mC[1]}"); A(f"v_mov_b32 v17, v{self.lS[1]}")
        A("ds_write2st64_b64 v13, v[14:15], v[16:17] offset0:0 offset1:1")
        for i in range(8):
            for qh in range(2):
                o = self.O(i, qh)
                A(f"ds_write2st64_b64 v12, {self.v2(o)}, {self.v2(o+2)} offset0:{(qh*2)*8+i} offset1:{(qh*2+1)*8+i}")
        A(f"s_lshl_b32 {self.sT}, {self.sWave}, 12")
        A(f"v_lshl_add_u32 v12, v0, 3, {self.sT}")
        A(f"s_lshr_b32 {self.sT}, {self.sWave}, 1"); A(f"s_lshl_b32 {self.sT}, {self.sT}, 9"); A(f"s_add_u32 {self.sT}, {self.sT}, 0x10000")
        A(f"v_lshl_add_u32 v13, v0, 3, {self.sT}")
        A("s_waitcnt lgkmcnt(0)")
        A("s_barrier")
        ST = self.S0
        R = self.KA
        for s in range(4):
            A(f"ds_read_b64 {self.v2(ST+2*s)}, v13 offset:{s*1024}")
        A("s_waitcnt vmcnt(0)")
        for s in range(4):
            for i in range(8):
                A(f"ds_read_b64 {self.v2(R+(s*8+i)*2)}, v12 offset:{s*16384+i*512}")
        PP = self.KB
        A(f"s_mul_i32 s79, {self.sWave}, {4096+512}")
        A("v_lshlrev_b32 v18, 3, v0")
        A(f"s_lshr_b32 s3, {self.sPair}, 1"); A("s_lshl_b32 s3, s3, 2")
        A(f"s_and_b32 s22, {self.sPair}, 1"); A("s_lshl_b32 s22, s22, 4"); A("s_lshl_b32 s22, 1, s22")
        A(f"s_cmp_eq_u32 {self.sRole}, 1")
        A("s_cbranch_scc1 L_prod")
        C("consumer: wait for the producer's flag, fetch its partial")
        A("s_mov_b32 s23, 0x400000")
        L("L_spin")
        A(f"buffer_load_dword v19, off, {self.sD}, s3 sc1")
        A("s_waitcnt vmcnt(0)")
        A("v_readfirstlane_b32 s2, v19")
        A("s_and_b32 s2, s2, s22")
        A("s_cbranch_scc1 L_got")
        A("s_sub_u32 s23, s23, 1")
        A("s_cbranch_scc1 L_got")
        A("s_sleep 1")
        A("s_branch L_spin")
        L("L_got")
        for k in range(4):
            A(f"buffer_load_dwordx4 {self.v4(PP+4*k)}, v3, {self.sW}, s79 offen offset:{k*1024} sc1")
        A("s_add_u32 s79, s79, 4096")
        A(f"buffer_load_dwordx2 {self.v2(ST+8)}, v18, {self.sW}, s79 offen sc1")
        self.stamp()
        A("s_waitcnt vmcnt(0) lgkmcnt(0)")
        M = 14
        A(f"v_max3_f32 v{M}, v{ST}, v{ST+2}, v{ST+4}")
        A(f"v_max3_f32 v{M}, v{M}, v{ST+6}, v{ST+8}")
        for s in range(5):
            A(f"v_sub_f32 v{ST+2*s}, v{ST+2*s}, v{M}")
        for s in range(5):
            A(f"v_exp_f32 v{ST+2*s}, v{ST+2*s}")
        A("s_nop 0")
        A(f"v_mul_f32 v15, v{ST}, v{ST+1}")
        for s in range(1, 5):
            A(f"v_fmac_f32 v15, v{ST+2*s}, v{ST+2*s+1}")
        A("v_rcp_f32 v15, v15")
        A("s_nop 0")
        for s in range(5):
            A(f"v_mul_f32 v{ST+2*s}, v{ST+2*s}, v15")
        for e in range(16):
            A(f"v_mul_f32 v{PP+e}, v{PP+e}, v{ST+8}")
        for s in range(4):
            for e in range(16):
                A(f"v_fmac_f32 v{PP+e}, v{R+s*16+e}, v{ST+2*s}")
        OUT = self.VB
        for rr in range(2):
            for k in range(4):
                A(f"v_cvt_pk_bf16_f32 v{OUT+rr*4+k}, v{PP+(2*k)*2+rr}, v{PP+(2*k+1)*2+rr}")
        A("v_and_b32 v12, 15, v0"); A("v_lshlrev_b32 v12, 8, v12"); A("v_lshrrev_b32 v13, 4, v0"); A("v_lshl_add_u32 v12, v13, 6, v12")
        A(f"s_lshr_b32 {self.sT}, {self.sWave}, 1"); A(f"s_lshl_b32 {self.sT}, {self.sT}, 12")
        A(f"s_and_b32 s2, {self.sWave}, 1"); A("s_lshl_b32 s2, s2, 5"); A(f"s_add_u32 {self.sT}, {self.sT}, s2")
        for rr in range(2):
            A(f"buffer_store_dwordx4 {self.v4(OUT+rr*4)}, v12, {self.sO}, {self.sT} offen offset:{rr*16}")
        A("s_branch L_fin")
        L("L_prod")
        A("s_waitcnt lgkmcnt(0)")
        A(f"v_max3_f32 v{M}, v{ST}, v{ST+2}, v{ST+4}")
        A(f"v_max_f32 v{M}, v{M}, v{ST+6}")
        for s in range(4):
            A(f"v_sub_f32 v{ST+2*s}, v{ST+2*s}, v{M}")
        for s in range(4):
            A(f"v_exp_f32 v{ST+2*s}, v{ST+2*s}")
        A("s_nop 0")
        A(f"v_mul_f32 v15, v{ST}, v{ST+1}")
        for s in range(1, 4):
            A(f"v_fmac_f32 v15, v{ST+2*s}, v{ST+2*s+1}")
        for e in range(16):
            A(f"v_mul_f32 v{PP+e}, v{R+e}, v{ST}")
        for s in range(1, 4):
            for e in range(16):
                A(f"v_fmac_f32 v{PP+e}, v{R+s*16+e}, v{ST+2*s}")
        for k in range(4):
            A(f"buffer_store_dwordx4 {self.v4(PP+4*k)}, v3, {self.sW}, s79 offen offset:{k*1024} sc1")
        A("s_add_u32 s79, s79, 4096")
        A(f"buffer_store_dwordx2 v[14:15], v18, {self.sW}, s79 offen sc1")
        if self.stamps: self.nstamp -= 1
        self.stamp()
        A("s_waitcnt vmcnt(0)")
        A("s_barrier")
        A(f"s_cmp_eq_u32 {self.sWave}, 0")
        A("s_cbranch_scc0 L_fin")
        A("v_mov_b32 v19, s22")
        A("s_mov_b64 exec, 1")
        A(f"buffer_atomic_or v19, off, {self.sD}, s3 sc1")
        A("s_mov_b64 exec, -1")
        L("L_fin")
        if self.padto:
            L("L_pad")
            A("s_memrealtime s[98:99]")
            A("s_waitcnt lgkmcnt(0)")
            A("s_sub_u32 s98, s98, s96")
            A(f"s_cmp_lt_u32 s98, {self.padto}")
            A("s_cbranch_scc1 L_pad")
        if self.stamps:
            A("s_waitcnt vmcnt(0)")
            self.stamp()
            A("s_getreg_b32 s2, hwreg(HW_REG_XCC_ID)")
            A("s_waitcnt lgkmcnt(0)")
            A("v_mov_b32 v10, 0")
            for k in range(self.nstamp):
                A(f"v_writelane_b32 v10, s{80+2*k}, {k}")
            A("v_writelane_b32 v10, s2, 14")
            A(f"v_writelane_b32 v10, {self.sRole}, 15")
            A(f"s_lshl_b32 s2, {self.sPair}, 1"); A(f"s_add_u32 s2, s2, {self.sRole}"); A("s_lshl_b32 s2, s2, 2"); A(f"s_add_u32 s2, s2, {self.sWave}")
            A("s_lshl_b32 s2, s2, 6"); A("s_add_u32 s2, s2, 0x800000")
            self.srd(52, 20, 21, None, 0x1000000)
            A("v_lshlrev_b32 v11, 2, v0")
            A("v_cmp_gt_u32 vcc, 16, v0")
            A("s_and_saveexec_b64 s[22:23], vcc")
            A(f"buffer_store_dword v10, v11, {self.sW}, s2 offen")
        L("L_end")
        A("s_endpgm")
        L("L_tree")
        A("s_waitcnt vmcnt(24)")
        for s in range(4):
            for qh in range(2):
                cc = "0" if s == 0 else self.v4(self.S(0, qh))
                A(f"v_mfma_f32_16x16x32_bf16 {self.v4(self.S(0,qh))}, {self.v4(self.O0+s*4)}, {self.Q(qh,s)}, {cc}")
        big = -1.0e9 * math.sqrt(128.0)
        A("v_lshlrev_b32 v14, 16, v14"); A("v_lshlrev_b32 v15, 16, v15")
        A("v_sub_f32 v14, 1.0, v14"); A("v_sub_f32 v15, 1.0, v15")
        A(f"v_mul_f32 v14, 0x{f2u(big):08x}, v14"); A(f"v_mul_f32 v15, 0x{f2u(big):08x}, v15")
        for k in (1, 2, 3, 5, 6, 7):
            A(f"v_mov_b32 v{self.VT+k}, 0"); A(f"v_mov_b32 v{self.P0+k}, 0")
        for qh in range(2):
            A(f"v_add_f32 v{self.S(0,qh,0)}, v{self.S(0,qh,0)}, v14")
            A(f"v_add_f32 v{self.S(0,qh,1)}, v{self.S(0,qh,1)}, v15")
            A(f"v_max_f32 v{self.mR[qh]}, v{self.S(0,qh,0)}, v{self.S(0,qh,1)}")
        self.xlane(self.mR[0], self.mR[1], "v_max_f32")
        for qh in range(2):
            A(f"v_mul_f32 v{self.mC[qh]}, {self.sC}, v{self.mR[qh]}")
        for qh in range(2):
            for r in range(2):
                s = self.S(0, qh, r)
                A(f"v_fma_f32 v{s}, v{s}, {self.sC}, -v{self.mC[qh]}")
        for qh in range(2):
            for r in range(2):
                s = self.S(0, qh, r)
                A(f"v_exp_f32 v{s}, v{s}")
        A("s_nop 0")
        for qh in range(2):
            A(f"v_add_f32 v{self.lS[qh]}, v{self.S(0,qh,0)}, v{self.S(0,qh,1)}")
            A(f"v_cvt_pk_bf16_f32 v{self.P(qh)}, v{self.S(0,qh,0)}, v{self.S(0,qh,1)}")
        for i in range(8):
            T = self.VT + (i % 2)*4
            sel = self.sSelLo if i % 2 == 0 else self.sSelHi
            A(f"v_perm_b32 v{T}, v{self.VT+12+i//2}, v{self.VT+8+i//2}, {sel}")
            A("s_nop 1")
            for qh in range(2):
                A(f"v_mfma_f32_16x16x32_bf16 {self.v4(self.O(i,qh))}, {self.v4(T)}, {self.v4(self.P(qh))}, 0")
        A("s_branch L_loop")
        self.o.append('.section .rodata,"a"'); self.o.append(".p2align 6"); self.o.append(f".amdhsa_kernel {KNAME}")
        for d in ("next_free_vgpr 320", "next_free_sgpr 102", "accum_offset 256", "group_segment_fixed_size 0", "kernarg_size 72",
                  "user_sgpr_count 2", "user_sgpr_kernarg_segment_ptr 1", "system_sgpr_workgroup_id_x 1"):
            self.o.append("  .amdhsa_"+d)
        self.o.append(".end_amdhsa_kernel")
        return "\n".join(self.o)+"\n"

if __name__ == "__main__":
    out = sys.argv[1]
    kw = eval("dict(" + (sys.argv[2] if len(sys.argv) > 2 else "") + ")")
    open(out, "w").write(Gen(**kw).gen())
```

```python
import sys, math
KNAME = "standalone__tree_speculative_verify_tree_attention_over_candidate_token_tree__sampling_kernel"

HEADER = """; Kernarg layout for this problem (72 bytes, ptrs only, base s[0:1]):
"""

def f2u(x):
    import struct
    return struct.unpack("<I", struct.pack("<f", x))[0]

class Gen:
    def __init__(self, NTP=(7,7,7,7), NTC=(9,9,9,9), flags="nt", stamps=False, prodbit=1, pairmap=0, treerole=1, padto=0, oflags='', nvgpr=320, ldsx=0):
        self.oflags=oflags; self.nvgpr=nvgpr; self.ldsx=ldsx
        self.padto=padto
        self.o = []
        self.NTP, self.NTC, self.flags, self.stamps = NTP, NTC, flags, stamps
        self.prodbit, self.pairmap, self.treerole = prodbit, pairmap, treerole
        assert sum(NTP)+sum(NTC) == 64
        for nt in (NTP, NTC):
            assert list(nt) == sorted(nt, reverse=True) and nt[0]-nt[-1] <= 1 and nt[-1] >= 2
    def A(self, s): self.o.append("  "+s)
    def L(self, s): self.o.append(s+":")
    def C(self, s): self.o.append("  ; "+s)

    vKa, vKb, vV, vLane = 1, 2, 3, 0
    mR = (4, 5); mC = (6, 7); lS = (8, 9); fS = (10, 11)
    T0 = 12
    S0 = 20
    P0 = 36
    VT = 44
    O0 = 60
    KA, VA, KB, VB = 124, 156, 188, 220
    def S(self, t, qh, r=0): return self.S0 + (t*2+qh)*4 + r
    def P(self, qh, k=0): return self.P0 + qh*4 + k
    def O(self, i, qh, r=0): return self.O0 + (i*2+qh)*4 + r
    @staticmethod
    def v4(r): return f"v[{r}:{r+3}]"
    @staticmethod
    def v2(r): return f"v[{r}:{r+1}]"
    def Q(self, qh, s): r = (qh*4+s)*4; return f"a[{r}:{r+3}]"
    sK, sV, sQ, sKT, sVT, sM, sO, sW, sD = "s[24:27]", "s[28:31]", "s[32:35]", "s[36:39]", "s[40:43]", "s[44:47]", "s[48:51]", "s[52:55]", "s[56:59]"
    sPair, sRole, sWave, sNT, sRem, sA, sB, sPos, sNt, sNTmin, sKst, sT = ["s%d" % i for i in range(60, 72)]
    sC, sSelLo, sSelHi = "s72", "s73", "s74"
    sEx = "s[76:77]"
    nstamp = 0
    def stamp(self):
        if self.stamps:
            r = 80 + 2*self.nstamp
            self.A(f"s_memrealtime s[{r}:{r+1}]")
            self.nstamp += 1

    def loadK(self, Kb):
        for blk, so in ((0, self.sA), (1, self.sB)):
            for x in range(4):
                va = self.vKa if x % 2 == 0 else self.vKb
                off = 128*(x//2)
                self.A(f"buffer_load_dwordx4 {self.v4(Kb+(blk*4+x)*4)}, v{va}, {self.sK}, {so} offen offset:{off} {self.flags}")
    def loadV(self, Vb):
        for j in range(8):
            so = self.sA if j < 4 else self.sB
            self.A(f"buffer_load_dwordx4 {self.v4(Vb+j*4)}, v{self.vV}, {self.sV}, {so} offen offset:{(j%4)*1024} {self.flags}")
    def nexttile(self):
        A = self.A
        A(f"s_add_u32 {self.sPos}, {self.sPos}, 0x8000")
        A(f"s_add_u32 {self.sNt}, {self.sNt}, 1")
        A(f"s_cmp_eq_u32 {self.sNt}, {self.sNTmin}")
        A(f"s_cselect_b32 {self.sT}, {self.sKst}, 0x4000")
        A(f"s_cmp_lt_u32 {self.sNt}, {self.sNT}")
        A(f"s_cselect_b32 {self.sA}, {self.sPos}, 0x40000000")
        A(f"s_add_u32 {self.sB}, {self.sA}, {self.sT}")

    def xlane(self, a, b, op):
        A = self.A
        A("s_nop 1")
        A(f"v_permlane32_swap_b32 v{a}, v{b}")
        A(f"{op} v{a}, v{a}, v{b}")
        A(f"v_mov_b32 v{b}, v{a}")
        A("s_nop 1")
        A(f"v_permlane16_swap_b32 v{a}, v{b}")
        A(f"{op} v{a}, v{a}, v{b}")
        A(f"v_mov_b32 v{b}, v{a}")
        A("s_nop 1")
        A(f"v_permlane32_swap_b32 v{a}, v{b}")

    def tile(self, Kb, Vb):
        A = self.A
        X = lambda blk, x, c=0: Kb + (blk*4+x)*4 + c
        A("s_waitcnt vmcnt(24)")
        A(f"s_mov_b64 exec, {self.sEx}")
        for blk in range(2):
            for x in (0, 2):
                for c in range(4):
                    A(f"v_swap_b32 v{X(blk,x,c)}, v{X(blk,x+1,c)}")
        A("s_mov_b64 exec, -1")
        for blk in range(2):
            for x in (1, 3):
                for c in range(4):
                    r = X(blk, x, c)
                    A(f"v_mov_b32_dpp v{r}, v{r} row_ror:8 row_mask:0xf bank_mask:0xf")
        for si, s in enumerate((0, 2, 1, 3)):
            for t in range(2):
                for qh in range(2):
                    c = "0" if si == 0 else self.v4(self.S(t, qh))
                    A(f"v_mfma_f32_16x16x32_bf16 {self.v4(self.S(t,qh))}, {self.v4(X(t,s))}, {self.Q(qh,s)}, {c}")
        self.nexttile()
        self.loadK(Kb)
        ta, tb = self.T0, self.T0+1
        for qh, tr in ((0, ta), (1, tb)):
            S = lambda t, r: self.S(t, qh, r)
            A(f"v_max3_f32 v{tr}, v{S(0,0)}, v{S(0,1)}, v{S(0,2)}")
            A(f"v_max3_f32 v{tr}, v{tr}, v{S(0,3)}, v{S(1,0)}")
            A(f"v_max3_f32 v{tr}, v{tr}, v{S(1,1)}, v{S(1,2)}")
            A(f"v_max3_f32 v{tr}, v{tr}, v{S(1,3)}, v{self.mR[qh]}")
        self.xlane(ta, tb, "v_max_f32")
        for qh, tr in ((0, ta), (1, tb)):
            A(f"v_mov_b32 v{self.mR[qh]}, v{tr}")
            A(f"v_mul_f32 v{tr}, {self.sC}, v{tr}")
            A(f"v_sub_f32 v{self.fS[qh]}, v{self.mC[qh]}, v{tr}")
            A(f"v_mov_b32 v{self.mC[qh]}, v{tr}")
            A(f"v_exp_f32 v{self.fS[qh]}, v{self.fS[qh]}")
        for qh in range(2):
            for t in range(2):
                for r in range(4):
                    s = self.S(t, qh, r)
                    A(f"v_fma_f32 v{s}, v{s}, {self.sC}, -v{self.mC[qh]}")
        for qh in range(2):
            for t in range(2):
                for r in range(4):
                    s = self.S(t, qh, r)
                    A(f"v_exp_f32 v{s}, v{s}")
        for qh in range(2):
            A(f"v_mul_f32 v{self.lS[qh]}, v{self.lS[qh]}, v{self.fS[qh]}")
        for t in range(2):
            for r in range(4):
                for qh in range(2):
                    A(f"v_add_f32 v{self.lS[qh]}, v{self.lS[qh]}, v{self.S(t,qh,r)}")
        for qh in range(2):
            for t in range(2):
                for h in range(2):
                    A(f"v_cvt_pk_bf16_f32 v{self.P(qh,t*2+h)}, v{self.S(t,qh,2*h)}, v{self.S(t,qh,2*h+1)}")
        for i in range(8):
            for qh in range(2):
                for r in range(4):
                    o = self.O(i, qh, r)
                    A(f"v_mul_f32 v{o}, v{o}, v{self.fS[qh]}")
        A("s_waitcnt vmcnt(24)")
        def perms(i):
            T = self.VT + (i % 4)*4
            sel = self.sSelLo if i % 2 == 0 else self.sSelHi
            for k in range(4):
                A(f"v_perm_b32 v{T+k}, v{Vb+(2*k+1)*4+i//2}, v{Vb+(2*k)*4+i//2}, {sel}")
        perms(0); perms(1)
        for i in range(8):
            T = self.VT + (i % 4)*4
            for qh in range(2):
                A(f"v_mfma_f32_16x16x32_bf16 {self.v4(self.O(i,qh))}, {self.v4(T)}, {self.v4(self.P(qh))}, {self.v4(self.O(i,qh))}")
            if i+2 < 8: perms(i+2)
        self.loadV(Vb)

    def srd(self, d, lo, hi, add, nbytes):
        A = self.A
        if add is None:
            A(f"s_mov_b32 s{d}, s{lo}"); A(f"s_mov_b32 s{d+1}, s{hi}")
        else:
            A(f"s_add_u32 s{d}, s{lo}, {add}"); A(f"s_addc_u32 s{d+1}, s{hi}, 0")
        A(f"s_mov_b32 s{d+2}, {nbytes}")
        A(f"s_mov_b32 s{d+3}, 0x20000")

    def gen(self):
        A, L, C = self.A, self.L, self.C
        LDS = 65536 + 4096 + self.ldsx
        self.o.append(HEADER + f"; @launch grid=(256,1,1) block=(256,1,1) lds={LDS}")
        self.o.append('.amdgcn_target "amdgcn-amd-amdhsa--gfx950"')
        self.o.append(".text"); self.o.append(f".globl {KNAME}"); self.o.append(".p2align 8")
        self.o.append(f".type {KNAME},@function"); L(KNAME)
        self.stamp()
        if self.padto: A("s_memrealtime s[96:97]")
        A("s_load_dwordx16 s[4:19], s[0:1], 0")
        A("s_load_dwordx2 s[20:21], s[0:1], 64")
        A("s_cmp_ge_u32 s2, 256")
        A("s_cbranch_scc1 L_end")
        A("v_lshrrev_b32 v4, 6, v0")
        A("v_and_b32 v0, 63, v0")
        if self.pairmap == 0:
            A(f"s_lshr_b32 {self.sPair}, s2, 1")
            A(f"s_and_b32 {self.sRole}, s2, 1")
        elif self.pairmap == 1:
            A(f"s_lshr_b32 {self.sPair}, s2, 4"); A(f"s_lshl_b32 {self.sPair}, {self.sPair}, 3")
            A(f"s_and_b32 {self.sRole}, s2, 7"); A(f"s_add_u32 {self.sPair}, {self.sPair}, {self.sRole}")
            A(f"s_bfe_u32 {self.sRole}, s2, 0x10003")
        if self.prodbit == 0:
            A(f"s_xor_b32 {self.sRole}, {self.sRole}, 1")
        A(f"v_readfirstlane_b32 {self.sWave}, v4")
        C("K lane offsets: rho=l%16, g=l/16, rho'=rho%8, hi=rho/8; key(rho)=4*(rho%4)+rho/4")
        A("v_and_b32 v1, 3, v0"); A("v_lshlrev_b32 v1, 10, v1")
        A("v_bfe_u32 v5, v0, 2, 1"); A("v_lshl_add_u32 v1, v5, 8, v1")
        A("v_lshrrev_b32 v5, 4, v0"); A("v_lshl_add_u32 v1, v5, 4, v1")
        A("v_bfe_u32 v5, v0, 3, 1"); A("v_lshlrev_b32 v5, 6, v5")
        A("v_add_u32 v2, 0x240, v1"); A("v_sub_u32 v2, v2, v5")
        A("v_add_u32 v1, v1, v5")
        A("v_lshlrev_b32 v3, 4, v0")
        A("v_and_b32 v6, 15, v0"); A("v_lshlrev_b32 v6, 8, v6"); A("v_lshrrev_b32 v5, 4, v0"); A("v_lshl_add_u32 v6, v5, 4, v6")
        A("v_add_u32 v7, 0x1000, v6")
        PB = sum(self.NTP)*8192; CB = sum(self.NTC)*8192
        def kact(nt): return sum(1 for x in nt if x > nt[-1])
        A(f"s_cmp_eq_u32 {self.sRole}, 1")
        A(f"s_cselect_b32 {self.sNTmin}, {self.NTP[-1]}, {self.NTC[-1]}")
        A(f"s_cselect_b32 {self.sKst}, {kact(self.NTP)}, {kact(self.NTC)}")
        A(f"s_cselect_b32 s22, {CB}, 0")
        A(f"s_cselect_b32 s23, {sum(self.NTP)}, {sum(self.NTC)}")
        A(f"s_cmp_lt_u32 {self.sWave}, {self.sKst}")
        A(f"s_addc_u32 {self.sNT}, {self.sNTmin}, 0")
        A(f"s_lshl_b32 {self.sKst}, {self.sKst}, 12")
        A("s_lshl_b32 s23, s23, 13")
        A(f"s_lshl_b32 {self.sT}, {self.sPair}, 19")
        A(f"s_add_u32 s22, s22, {self.sT}")
        A(f"s_lshl_b32 {self.sPos}, {self.sWave}, 12")
        A(f"s_mov_b32 {self.sA}, {self.sPos}")
        A(f"s_add_u32 {self.sB}, {self.sA}, 0x4000")
        A(f"s_mov_b32 {self.sNt}, 0")
        A(f"s_lshl_b32 s3, {self.sPair}, 13")
        A("s_waitcnt lgkmcnt(0)")
        self.srd(24, 6, 7, "s22", "s23")
        self.loadK(self.KA)
        self.stamp()
        self.srd(32, 4, 5, "s3", 8192)
        for qh in range(2):
            for s in range(4):
                A(f"buffer_load_dwordx4 {self.Q(qh,s)}, v{6+qh}, {self.sQ}, 0 offen offset:{s*64}")
        self.srd(28, 8, 9, "s22", "s23")
        self.srd(48, 16, 17, "s3", 8192)
        A(f"s_lshl_b32 {self.sT}, {self.sPair}, 11")
        self.srd(36, 10, 11, self.sT, 2048)
        self.srd(40, 12, 13, self.sT, 2048)
        A(f"s_lshr_b32 {self.sT}, {self.sPair}, 3"); A(f"s_lshl_b32 {self.sT}, {self.sT}, 7")
        self.srd(44, 14, 15, self.sT, 128)
        A(f"s_mul_i32 {self.sT}, {self.sPair}, {4*(4096+512)}")
        self.srd(52, 20, 21, self.sT, 4*(4096+512))
        self.srd(56, 18, 19, None, 256)
        A(f"s_lshl_b32 s78, {self.sWave}, 1"); A(f"s_add_u32 s78, s78, {self.sRole}")
        A(f"s_cmp_eq_u32 s78, {self.treerole}")
        A("s_cbranch_scc0 L_notree1")
        C("tree loads: K rows key(rho)*256 + (4s+g)*16 ; V rows; mask")
        A("v_and_b32 v12, 3, v0"); A("v_lshlrev_b32 v12, 10, v12")
        A("v_bfe_u32 v5, v0, 2, 2"); A("v_lshl_add_u32 v12, v5, 8, v12")
        A("v_lshrrev_b32 v5, 4, v0"); A("v_lshl_add_u32 v12, v5, 4, v12")
        for s in range(4):
            A(f"buffer_load_dwordx4 {self.v4(self.O0+s*4)}, v12, {self.sKT}, 0 offen offset:{s*64}")
        for j in range(2):
            A(f"buffer_load_dwordx4 {self.v4(self.VT+8+j*4)}, v3, {self.sVT}, 0 offen offset:{j*1024}")
        A("v_and_b32 v13, 7, v0"); A("v_lshlrev_b32 v13, 4, v13"); A("v_lshl_add_u32 v13, v5, 1, v13")
        A(f"buffer_load_ushort v14, v13, {self.sM}, 0 offen")
        A(f"buffer_load_ushort v15, v13, {self.sM}, 0 offen offset:8")
        L("L_notree1")
        self.loadV(self.VA)
        self.nexttile()
        self.loadK(self.KB)
        self.loadV(self.VB)
        c = (128 ** -0.5) * math.log2(math.e)
        A(f"s_mov_b32 {self.sC}, 0x{f2u(c):08x}")
        A(f"s_mov_b32 {self.sSelLo}, 0x05040100")
        A(f"s_mov_b32 {self.sSelHi}, 0x07060302")
        A("s_mov_b32 s76, 0xff00ff00"); A("s_mov_b32 s77, 0xff00ff00")
        A(f"s_mov_b32 {self.sRem}, {self.sNT}")
        A(f"s_cmp_eq_u32 s78, {self.treerole}")
        A("s_cbranch_scc1 L_tree")
        for qh in range(2):
            A(f"v_mov_b32 v{self.mR[qh]}, 0x{f2u(-3.0e38):08x}")
            A(f"v_mov_b32 v{self.mC[qh]}, 0x{f2u(-3.0e38*c):08x}")
            A(f"v_mov_b32 v{self.lS[qh]}, 0")
        for r in range(64):
            A(f"v_mov_b32 v{self.O0+r}, 0")
        L("L_loop")
        self.tile(self.KA, self.VA)
        A(f"s_sub_u32 {self.sRem}, {self.sRem}, 1")
        A(f"s_cmp_eq_u32 {self.sRem}, 0")
        A("s_cbranch_scc1 L_done")
        self.tile(self.KB, self.VB)
        A(f"s_sub_u32 {self.sRem}, {self.sRem}, 1")
        A(f"s_cmp_lg_u32 {self.sRem}, 0")
        A("s_cbranch_scc1 L_loop")
        L("L_done")
        self.stamp()
        C("---- epilogue: cross-wave reduce through LDS")
        self.xlane(self.lS[0], self.lS[1], "v_add_f32")
        A(f"s_lshl_b32 {self.sT}, {self.sWave}, 14")
        A(f"v_lshl_add_u32 v12, v0, 3, {self.sT}")
        A(f"s_lshl_b32 {self.sT}, {self.sWave}, 10"); A(f"s_add_u32 {self.sT}, {self.sT}, 0x10000")
        A(f"v_lshl_add_u32 v13, v0, 3, {self.sT}")
        A(f"v_mov_b32 v14, v{self.mC[0]}"); A(f"v_mov_b32 v15, v{self.lS[0]}")
        A(f"v_mov_b32 v16, v{self.mC[1]}"); A(f"v_mov_b32 v17, v{self.lS[1]}")
        A("ds_write2st64_b64 v13, v[14:15], v[16:17] offset0:0 offset1:1")
        for i in range(8):
            for qh in range(2):
                o = self.O(i, qh)
                A(f"ds_write2st64_b64 v12, {self.v2(o)}, {self.v2(o+2)} offset0:{(qh*2)*8+i} offset1:{(qh*2+1)*8+i}")
        A(f"s_lshl_b32 {self.sT}, {self.sWave}, 12")
        A(f"v_lshl_add_u32 v12, v0, 3, {self.sT}")
        A(f"s_lshr_b32 {self.sT}, {self.sWave}, 1"); A(f"s_lshl_b32 {self.sT}, {self.sT}, 9"); A(f"s_add_u32 {self.sT}, {self.sT}, 0x10000")
        A(f"v_lshl_add_u32 v13, v0, 3, {self.sT}")
        A("s_waitcnt lgkmcnt(0)")
        A("s_barrier")
        ST = self.S0
        R = self.KA
        for s in range(4):
            A(f"ds_read_b64 {self.v2(ST+2*s)}, v13 offset:{s*1024}")
        A("s_waitcnt vmcnt(0)")
        for s in range(4):
            for i in range(8):
                A(f"ds_read_b64 {self.v2(R+(s*8+i)*2)}, v12 offset:{s*16384+i*512}")
        PP = self.KB
        A(f"s_mul_i32 s79, {self.sWave}, {4096+512}")
        A("v_lshlrev_b32 v18, 3, v0")
        A(f"s_lshr_b32 s3, {self.sPair}, 1"); A("s_lshl_b32 s3, s3, 2")
        A(f"s_and_b32 s22, {self.sPair}, 1"); A("s_lshl_b32 s22, s22, 4"); A("s_lshl_b32 s22, 1, s22")
        A(f"s_cmp_eq_u32 {self.sRole}, 1")
        A("s_cbranch_scc1 L_prod")
        C("consumer: wait for the producer's flag, fetch its partial")
        A("s_mov_b32 s23, 0x400000")
        L("L_spin")
        A(f"buffer_load_dword v19, off, {self.sD}, s3 sc1")
        A("s_waitcnt vmcnt(0)")
        A("v_readfirstlane_b32 s2, v19")
        A("s_and_b32 s2, s2, s22")
        A("s_cbranch_scc1 L_got")
        A("s_sub_u32 s23, s23, 1")
        A("s_cbranch_scc1 L_got")
        A("s_sleep 1")
        A("s_branch L_spin")
        L("L_got")
        for k in range(4):
            A(f"buffer_load_dwordx4 {self.v4(PP+4*k)}, v3, {self.sW}, s79 offen offset:{k*1024} sc1")
        A("s_add_u32 s79, s79, 4096")
        A(f"buffer_load_dwordx2 {self.v2(ST+8)}, v18, {self.sW}, s79 offen sc1")
        self.stamp()
        A("s_waitcnt vmcnt(0) lgkmcnt(0)")
        M = 14
        A(f"v_max3_f32 v{M}, v{ST}, v{ST+2}, v{ST+4}")
        A(f"v_max3_f32 v{M}, v{M}, v{ST+6}, v{ST+8}")
        for s in range(5):
            A(f"v_sub_f32 v{ST+2*s}, v{ST+2*s}, v{M}")
        for s in range(5):
            A(f"v_exp_f32 v{ST+2*s}, v{ST+2*s}")
        A("s_nop 0")
        A(f"v_mul_f32 v15, v{ST}, v{ST+1}")
        for s in range(1, 5):
            A(f"v_fmac_f32 v15, v{ST+2*s}, v{ST+2*s+1}")
        A("v_rcp_f32 v15, v15")
        A("s_nop 0")
        for s in range(5):
            A(f"v_mul_f32 v{ST+2*s}, v{ST+2*s}, v15")
        for e in range(16):
            A(f"v_mul_f32 v{PP+e}, v{PP+e}, v{ST+8}")
        for s in range(4):
            for e in range(16):
                A(f"v_fmac_f32 v{PP+e}, v{R+s*16+e}, v{ST+2*s}")
        OUT = self.VB
        for rr in range(2):
            for k in range(4):
                A(f"v_cvt_pk_bf16_f32 v{OUT+rr*4+k}, v{PP+(2*k)*2+rr}, v{PP+(2*k+1)*2+rr}")
        A("v_and_b32 v12, 15, v0"); A("v_lshlrev_b32 v12, 8, v12"); A("v_lshrrev_b32 v13, 4, v0"); A("v_lshl_add_u32 v12, v13, 6, v12")
        A(f"s_lshr_b32 {self.sT}, {self.sWave}, 1"); A(f"s_lshl_b32 {self.sT}, {self.sT}, 12")
        A(f"s_and_b32 s2, {self.sWave}, 1"); A("s_lshl_b32 s2, s2, 5"); A(f"s_add_u32 {self.sT}, {self.sT}, s2")
        for rr in range(2):
            A(f"buffer_store_dwordx4 {self.v4(OUT+rr*4)}, v12, {self.sO}, {self.sT} offen offset:{rr*16} {self.oflags}")
        A("s_branch L_fin")
        L("L_prod")
        A("s_waitcnt lgkmcnt(0)")
        A(f"v_max3_f32 v{M}, v{ST}, v{ST+2}, v{ST+4}")
        A(f"v_max_f32 v{M}, v{M}, v{ST+6}")
        for s in range(4):
            A(f"v_sub_f32 v{ST+2*s}, v{ST+2*s}, v{M}")
        for s in range(4):
            A(f"v_exp_f32 v{ST+2*s}, v{ST+2*s}")
        A("s_nop 0")
        A(f"v_mul_f32 v15, v{ST}, v{ST+1}")
        for s in range(1, 4):
            A(f"v_fmac_f32 v15, v{ST+2*s}, v{ST+2*s+1}")
        for e in range(16):
            A(f"v_mul_f32 v{PP+e}, v{R+e}, v{ST}")
        for s in range(1, 4):
            for e in range(16):
                A(f"v_fmac_f32 v{PP+e}, v{R+s*16+e}, v{ST+2*s}")
        for k in range(4):
            A(f"buffer_store_dwordx4 {self.v4(PP+4*k)}, v3, {self.sW}, s79 offen offset:{k*1024} sc1")
        A("s_add_u32 s79, s79, 4096")
        A(f"buffer_store_dwordx2 v[14:15], v18, {self.sW}, s79 offen sc1")
        if self.stamps: self.nstamp -= 1
        self.stamp()
        A("s_waitcnt vmcnt(0)")
        A("s_barrier")
        A(f"s_cmp_eq_u32 {self.sWave}, 0")
        A("s_cbranch_scc0 L_fin")
        A("v_mov_b32 v19, s22")
        A("s_mov_b64 exec, 1")
        A(f"buffer_atomic_or v19, off, {self.sD}, s3 sc1")
        A("s_mov_b64 exec, -1")
        L("L_fin")
        if self.padto:
            L("L_pad")
            A("s_memrealtime s[98:99]")
            A("s_waitcnt lgkmcnt(0)")
            A("s_sub_u32 s98, s98, s96")
            A(f"s_cmp_lt_u32 s98, {self.padto}")
            A("s_cbranch_scc1 L_pad")
        if self.stamps:
            A("s_waitcnt vmcnt(0)")
            self.stamp()
            A("s_getreg_b32 s2, hwreg(HW_REG_XCC_ID)")
            A("s_waitcnt lgkmcnt(0)")
            A("v_mov_b32 v10, 0")
            for k in range(self.nstamp):
                A(f"v_writelane_b32 v10, s{80+2*k}, {k}")
            A("v_writelane_b32 v10, s2, 14")
            A(f"v_writelane_b32 v10, {self.sRole}, 15")
            A(f"s_lshl_b32 s2, {self.sPair}, 1"); A(f"s_add_u32 s2, s2, {self.sRole}"); A("s_lshl_b32 s2, s2, 2"); A(f"s_add_u32 s2, s2, {self.sWave}")
            A("s_lshl_b32 s2, s2, 6"); A("s_add_u32 s2, s2, 0x800000")
            self.srd(52, 20, 21, None, 0x1000000)
            A("v_lshlrev_b32 v11, 2, v0")
            A("v_cmp_gt_u32 vcc, 16, v0")
            A("s_and_saveexec_b64 s[22:23], vcc")
            A(f"buffer_store_dword v10, v11, {self.sW}, s2 offen")
        L("L_end")
        A("s_endpgm")
        L("L_tree")
        A("s_waitcnt vmcnt(24)")
        for s in range(4):
            for qh in range(2):
                cc = "0" if s == 0 else self.v4(self.S(0, qh))
                A(f"v_mfma_f32_16x16x32_bf16 {self.v4(self.S(0,qh))}, {self.v4(self.O0+s*4)}, {self.Q(qh,s)}, {cc}")
        big = -1.0e9 * math.sqrt(128.0)
        A("v_lshlrev_b32 v14, 16, v14"); A("v_lshlrev_b32 v15, 16, v15")
        A("v_sub_f32 v14, 1.0, v14"); A("v_sub_f32 v15, 1.0, v15")
        A(f"v_mul_f32 v14, 0x{f2u(big):08x}, v14"); A(f"v_mul_f32 v15, 0x{f2u(big):08x}, v15")
        for k in (1, 2, 3, 5, 6, 7):
            A(f"v_mov_b32 v{self.VT+k}, 0"); A(f"v_mov_b32 v{self.P0+k}, 0")
        for qh in range(2):
            A(f"v_add_f32 v{self.S(0,qh,0)}, v{self.S(0,qh,0)}, v14")
            A(f"v_add_f32 v{self.S(0,qh,1)}, v{self.S(0,qh,1)}, v15")
            A(f"v_max_f32 v{self.mR[qh]}, v{self.S(0,qh,0)}, v{self.S(0,qh,1)}")
        self.xlane(self.mR[0], self.mR[1], "v_max_f32")
        for qh in range(2):
            A(f"v_mul_f32 v{self.mC[qh]}, {self.sC}, v{self.mR[qh]}")
        for qh in range(2):
            for r in range(2):
                s = self.S(0, qh, r)
                A(f"v_fma_f32 v{s}, v{s}, {self.sC}, -v{self.mC[qh]}")
        for qh in range(2):
            for r in range(2):
                s = self.S(0, qh, r)
                A(f"v_exp_f32 v{s}, v{s}")
        A("s_nop 0")
        for qh in range(2):
            A(f"v_add_f32 v{self.lS[qh]}, v{self.S(0,qh,0)}, v{self.S(0,qh,1)}")
            A(f"v_cvt_pk_bf16_f32 v{self.P(qh)}, v{self.S(0,qh,0)}, v{self.S(0,qh,1)}")
        for i in range(8):
            T = self.VT + (i % 2)*4
            sel = self.sSelLo if i % 2 == 0 else self.sSelHi
            A(f"v_perm_b32 v{T}, v{self.VT+12+i//2}, v{self.VT+8+i//2}, {sel}")
            A("s_nop 1")
            for qh in range(2):
                A(f"v_mfma_f32_16x16x32_bf16 {self.v4(self.O(i,qh))}, {self.v4(T)}, {self.v4(self.P(qh))}, 0")
        A("s_branch L_loop")
        self.o.append('.section .rodata,"a"'); self.o.append(".p2align 6"); self.o.append(f".amdhsa_kernel {KNAME}")
        for d in (f"next_free_vgpr {self.nvgpr}", "next_free_sgpr 102", "accum_offset 256", "group_segment_fixed_size 0", "kernarg_size 72",
                  "user_sgpr_count 2", "user_sgpr_kernarg_segment_ptr 1", "system_sgpr_workgroup_id_x 1"):
            self.o.append("  .amdhsa_"+d)
        self.o.append(".end_amdhsa_kernel")
        return "\n".join(self.o)+"\n"

if __name__ == "__main__":
    out = sys.argv[1]
    kw = eval("dict(" + (sys.argv[2] if len(sys.argv) > 2 else "") + ")")
    open(out, "w").write(Gen(**kw).gen())
```

```python
import sys, math, struct
KNAME = "standalone__tree_speculative_verify_tree_attention_over_candidate_token_tree__sampling_kernel"
HEADER = """; Kernarg layout for this problem (72 bytes, ptrs only, base s[0:1]):
"""
def f2u(x): return struct.unpack("<I", struct.pack("<f", x))[0]
RINGB = 114688
PR, QS, TK, TV, MX, LX, LDS = 114688, 114688, 147456, 151552, 155648, 157696, 159744

class Gen:
    def __init__(self, NC0=17, NC1=17, flags="nt", stamps=False, padto=0, mapmode=0,
                 Dc=20, Dp=20, bc=4, bp=0, fetchat=1, treeat=0,
                 nohand=False, notree=False, noq=False, nopart=False, prio=3, nst=3, nfe=3, sflags='sc1', qmode=1, D2=40, oflags='', pre=True, warm=128, l2pf=False, wstamp=False, seg=2, AH=6, chk=1, frac=(0,)*8):
        self.AH, self.chk, self.frac = AH, chk, frac
        self.seg = seg
        self.warm, self.l2pf, self.wstamp = warm, l2pf, wstamp
        self.D2, self.oflags, self.pre = D2, oflags, pre
        self.nst, self.nfe, self.sflags, self.qmode = nst, nfe, sflags, qmode
        self.o = []
        self.NC0, self.NC1, self.flags, self.stamps, self.padto, self.mapmode = NC0, NC1, flags, stamps, padto, mapmode
        self.D = (Dc, Dp); self.boost = (bc, bp); self.fetchat = fetchat; self.treeat = treeat
        self.nohand, self.notree, self.noq, self.nopart, self.prio = nohand, notree, noq, nopart, prio
        assert max(NC0, NC1, 32-NC0, 32-NC1) <= 18
        assert 17 <= Dc <= 32 and 17 <= Dp <= 32
        self.uid = 0
    def A(self, s): self.o.append("  "+s)
    def L(self, s): self.o.append(s+":")
    def C(self, s): self.o.append("  ; "+s)
    vO = (1, 2); vKR = (3, 4, 5, 6); vVR = (7, 8); vPR = 9; vPW = 10; vTag = 11
    mR = (12, 13); mC = (14, 15); lS = (16, 17); T0 = 18
    St = 24; SS = 32; AO = 176; PO = 192; AC = 208; LR = 224; PK = 232; QR = 192
    vL16 = 236; vMask = 238; vDum = 237; vLX = 240; vOut = 241
    PB = 32
    @staticmethod
    def v4(r): return f"v[{r}:{r+3}]"
    @staticmethod
    def v2(r): return f"v[{r}:{r+1}]"
    def Q(self, qh, s): return self.v4(self.QR + (qh*4+s)*4)
    def acc(self, dt, qh): return self.AC + (dt*2+qh)*4
    sX, sQ, sKT, sVT, sM, sO, sW = "s[24:27]", "s[32:35]", "s[36:39]", "s[40:43]", "s[44:47]", "s[48:51]", "s[52:55]"
    sVb = (28, 29)
    sPair, sRole, sWave, sN, sRem, sA, sM0, sRd, sIdx, sP, sW4, sT = ["s%d" % i for i in range(60, 72)]
    sC, s4k, sF, sPw = "s72", "s73", "s74", "s75"
    nstamp = 0
    def stamp(self, idx):
        if self.stamps:
            r = 80 + 2*idx
            self.nstamp = max(self.nstamp, idx+1)
            self.A(f"s_memrealtime s[{r}:{r+1}]")
    def ringadv(self, r, lim=None):
        self.A(f"s_add_u32 {r}, {r}, 0x4000")
        self.A(f"s_cmp_ge_u32 {r}, {RINGB}")
        self.A(f"s_cselect_b32 s77, {RINGB}, 0")
        self.A(f"s_sub_u32 {r}, {r}, s77")
    def xlane(self, a, b, op):
        A = self.A
        A("s_nop 1")
        A(f"v_permlane32_swap_b32 v{a}, v{b}")
        A(f"{op} v{a}, v{a}, v{b}")
        A(f"v_mov_b32 v{b}, v{a}")
        A("s_nop 1")
        A(f"v_permlane16_swap_b32 v{a}, v{b}")
        A(f"{op} v{a}, v{a}, v{b}")
        A(f"v_mov_b32 v{b}, v{a}")
        A("s_nop 1")
        A(f"v_permlane32_swap_b32 v{a}, v{b}")
    def srd(self, d, lo, hi, add, nbytes):
        A = self.A
        if add is None:
            A(f"s_mov_b32 s{d}, s{lo}"); A(f"s_mov_b32 s{d+1}, s{hi}")
        else:
            A(f"s_add_u32 s{d}, s{lo}, {add}"); A(f"s_addc_u32 s{d+1}, s{hi}, 0")
        A(f"s_mov_b32 s{d+2}, {nbytes}")
        A(f"s_mov_b32 s{d+3}, 0x20000")
    def qk(self):
        A = self.A
        for s in range(4):
            A(f"s_waitcnt lgkmcnt({3-s})")
            for qh in range(2):
                d = self.v4(self.St+qh*4)
                A(f"v_mfma_f32_16x16x32_bf16 {d}, {self.v4(self.AO+s*4)}, {self.Q(qh,s)}, {'0' if s == 0 else d}")
    def pcalc(self):
        A = self.A
        A(f"s_set_gpr_idx_on {self.sIdx}, gpr_idx(SRC0)")
        for qh in range(2):
            for r in range(4):
                A(f"v_fma_f32 v{self.St+qh*4+r}, v{self.SS+qh*4+r}, {self.sC}, -v{self.mC[qh]}")
        A("s_set_gpr_idx_off")
        for r in range(4):
            for qh in range(2):
                A(f"v_exp_f32 v{self.St+qh*4+r}, v{self.St+qh*4+r}")
        A(f"s_add_u32 {self.sIdx}, {self.sIdx}, 8")
        A(f"v_add_u32 v{self.T0+3}, {self.sPw}, v{self.vPW}")
        A(f"s_add_u32 {self.sPw}, {self.sPw}, 0x1000"); A(f"s_and_b32 {self.sPw}, {self.sPw}, 0x7fff")
        for r in range(4):
            for qh in range(2):
                A(f"v_add_f32 v{self.lS[qh]}, v{self.lS[qh]}, v{self.St+qh*4+r}")
        for qh in range(2):
            for h in range(2):
                A(f"v_cvt_pk_bf16_f32 v{self.PK+qh*2+h}, v{self.St+qh*4+2*h}, v{self.St+qh*4+2*h+1}")
        A(f"ds_write2st64_b64 v{self.T0+3}, {self.v2(self.PK)}, {self.v2(self.PK+2)} offset0:0 offset1:1")
    def fetch(self):
        if self.nopart: return
        for k in range(self.nfe):
            self.A(f"buffer_load_dwordx4 {self.v4(self.PB+4*k)}, v{self.vL16}, {self.sW}, 0 offen offset:{k*1024} sc1")
    def check(self, t):
        A = self.A
        for k in range(3):
            A(f"v_xor_b32 v{t+k}, v{self.PB+4*k+3}, v{self.vTag}")
        A(f"v_or3_b32 v{t}, v{t}, v{t+1}, v{t+2}")
        A(f"v_cmp_ne_u32 vcc, 0, v{t}")
    def G(self, p):
        return self.PB + 4*(p//3) + p % 3

    def ld(self, i):
        self.A(f"buffer_load_dwordx4 v{self.vO[i%2]}, {self.sX}, {self.sA} offen offset:{i*256} {self.flags} lds")
    def loader(self):
        A, L = self.A, self.L
        L("L_loader")
        C = self.C
        C("source lane offsets: g*4096 + (slot ^ 2g ^ 8*(i%2))*16 ; row i through the immediate offset")
        A("v_lshlrev_b32 v1, 12, v9"); A("v_lshl_add_u32 v1, v10, 4, v1")
        A("v_xor_b32 v2, 0x80, v1")
        A("v_lshlrev_b32 v3, 8, v9"); A("v_lshl_add_u32 v3, v10, 4, v3")
        A("v_xor_b32 v4, 0x80, v3")
        if self.prio: A(f"s_setprio {self.prio}")
        A(f"s_mov_b32 {self.sA}, 0"); A("s_mov_b32 m0, 0")
        A("s_mov_b32 s27, 0x20000")
        A(f"s_lshl_b32 s3, {self.sPair}, 13")
        A("s_mov_b32 s34, 8192"); A("s_mov_b32 s35, 0x20000")
        A("s_mov_b64 vcc, 0")
        A("s_waitcnt lgkmcnt(0)")
        A("s_add_u32 s24, s6, s22"); A("s_addc_u32 s25, s7, 0")
        A("s_add_u32 s32, s4, s3"); A("s_addc_u32 s33, s5, 0")
        A(f"s_movk_i32 {self.s4k}, 0x1000")
        def qloads():
            for h in range(2):
                A(f"s_mov_b32 m0, {QS+h*4096}"); A("s_nop 0")
                for x in range(4):
                    A(f"buffer_load_dwordx4 v{3+x%2}, {self.sQ}, {self.s4k if h else '0'} offen offset:{x*1024} lds")
        if self.qmode == 2:
            qloads(); A("s_mov_b32 m0, 0"); A("s_nop 0")
        for i in range(16):
            self.ld(i)
            if i < 15: A("s_addk_i32 m0, 0x300"); A("s_nop 0")
        if self.qmode == 1: qloads()
        if any(self.frac):
            A("s_getreg_b32 s2, hwreg(HW_REG_XCC_ID)"); A("s_and_b32 s2, s2, 7"); A("s_mov_b32 s78, 0")
            for x in range(8):
                m = 0
                for b in range(32):
                    if int((b+1)*self.frac[x]+1e-9) != int(b*self.frac[x]+1e-9): m |= 1 << b
                if m:
                    A(f"s_cmp_eq_u32 s2, {x}"); A(f"s_cselect_b32 s78, 0x{m:08x}, s78")
        A(f"s_add_u32 s{self.sVb[0]}, s8, s22"); A(f"s_addc_u32 s{self.sVb[1]}, s9, 0")
        A(f"s_lshl_b32 {self.sRem}, {self.sN}, 1"); A(f"s_sub_u32 {self.sRem}, {self.sRem}, 1")
        A(f"s_mov_b32 {self.sM0}, 0"); A(f"s_mov_b32 {self.sF}, 0")
        A(f"s_movk_i32 {self.s4k}, 0x1000")
        A(f"s_cmp_eq_u32 {self.sRole}, 1")
        A("s_cbranch_scc1 L_ldp")
        for ro in range(2):
            R = "cp"[ro]; D = self.D[ro]
            if ro: L("L_ldp")
            if not self.noq and self.qmode == 0:
                for h in range(2):
                    A(f"s_mov_b32 m0, {QS+h*4096}")
                    for x in range(4):
                        A(f"s_waitcnt vmcnt({D-1})")
                        A(f"buffer_load_dwordx4 v{3+x%2}, {self.sQ}, {self.s4k if h else '0'} offen offset:{x*1024} lds")
            L(f"L_ld{R}l")
            A(f"s_add_u32 {self.sA}, {self.sA}, 0x4000")
            self.ringadv(self.sM0)
            A(f"s_cmp_eq_u32 {self.sRem}, {self.sN}")
            A(f"s_cbranch_scc0 L_ld{R}n")
            A(f"s_mov_b32 s24, s{self.sVb[0]}"); A(f"s_mov_b32 s25, s{self.sVb[1]}"); A(f"s_mov_b32 {self.sA}, 0")
            L(f"L_ld{R}n")
            if any(self.frac):
                A(f"s_bitcmp1_b32 s78, {self.sRem}"); A("s_cselect_b64 vcc, -1, 0")
            for i in range(16):
                if i == 0: A(f"s_mov_b32 m0, {self.sM0}")
                else: A("s_addk_i32 m0, 0x300")
                if i == D-17:
                    A(f"s_cmp_eq_u32 {self.sF}, 0")
                    A(f"s_cbranch_scc1 L_ld{R}f")
                    A(f"s_waitcnt vmcnt({D-1})")
                    self.ld(i)
                    A("s_barrier")
                    L(f"L_ld{R}b")
                else:
                    if any(self.frac):
                        self.uid += 1
                        A(f"s_waitcnt vmcnt({D})")
                        A(f"s_cbranch_vccnz L_g{self.uid}")
                    A(f"s_waitcnt vmcnt({D-1})")
                    if any(self.frac): L(f"L_g{self.uid}")
                    self.ld(i)
            nb = self.boost[ro]
            A(f"s_sub_u32 {self.sRem}, {self.sRem}, 1")
            A(f"s_cmp_lg_u32 {self.sRem}, {nb}")
            A(f"s_cbranch_scc1 L_ld{R}l")
            sig = -2
            self.o.append("@HOPON")
            for st in range(nb):
                A(f"s_add_u32 {self.sA}, {self.sA}, 0x4000")
                self.ringadv(self.sM0)
                for i in range(16):
                    j = st*16+i
                    if i == 0: A(f"s_mov_b32 m0, {self.sM0}")
                    else: A("s_addk_i32 m0, 0x300")
                    A(f"s_waitcnt vmcnt({self.D2-1})")
                    self.ld(i)
                    if j - self.D2 == sig*16+15:
                        A("s_barrier"); sig += 1
            while sig < nb:
                A(f"s_waitcnt vmcnt({(nb-1-sig)*16})")
                A("s_barrier"); sig += 1
            A("s_endpgm")
            self.o.append("@HOPOFF")
            L(f"L_ld{R}f")
            A(f"s_waitcnt vmcnt({D-1})")
            self.ld(D-17)
            A(f"s_mov_b32 {self.sF}, 1")
            A(f"s_branch L_ld{R}b")

    def treeloads(self):
        A = self.A; T0 = self.T0
        A(f"s_and_b32 s2, {self.sWave}, 1"); A("s_lshl_b32 s2, s2, 7")
        A(f"v_xor_b32 v{T0+4}, s2, v{self.vO[0]}")
        A(f"s_lshl_b32 s3, {self.sWave}, 10")
        A(f"s_add_u32 m0, s3, {TK}")
        A("s_nop 0")
        A(f"buffer_load_dwordx4 v{T0+4}, {self.sKT}, s3 offen lds")
        A(f"s_add_u32 m0, s3, {TV}")
        A("s_nop 0")
        A(f"buffer_load_dwordx4 v{T0+4}, {self.sVT}, s3 offen lds")
        A(f"buffer_load_dwordx2 {self.v2(self.vMask)}, v{self.vO[1]}, {self.sM}, 0 offen")
    def compute(self):
        A, L, C = self.A, self.L, self.C
        T0 = self.T0
        C("---- K phase")
        L("L_k")
        self.o.append("@WARMCALL")
        A("s_barrier")
        A(f"s_cmp_lg_u32 {self.sIdx}, 0")
        A("s_cbranch_scc1 L_k1")
        self.stamp(1)
        for qh in range(2):
            for s in range(4):
                A(f"ds_read_b128 {self.Q(qh,s)}, v{T0+s} offset:{qh*4096}")
        L("L_k1")
        for s in range(4):
            A(f"v_add_u32 v{T0+s}, {self.sRd}, v{self.vKR[s]}")
            A(f"ds_read_b128 {self.v4(self.AO+s*4)}, v{T0+s}")
        self.ringadv(self.sRd)
        self.qk()
        A("s_nop 7")
        for h in range(2):
            for qh in range(2):
                A(f"v_max3_f32 v{self.mR[qh]}, v{self.mR[qh]}, v{self.St+qh*4+2*h}, v{self.St+qh*4+2*h+1}")
        A(f"s_set_gpr_idx_on {self.sIdx}, gpr_idx(DST)")
        for k in range(8):
            A(f"v_mov_b32 v{self.SS+k}, v{self.St+k}")
        A("s_set_gpr_idx_off")
        A(f"s_add_u32 {self.sIdx}, {self.sIdx}, 8")
        A(f"s_sub_u32 {self.sRem}, {self.sRem}, 1")
        if not self.notree:
            A(f"s_cmp_eq_u32 {self.sRole}, 1")
            A("s_cbranch_scc1 L_kev")
        L("L_k2")
        A(f"s_cmp_lg_u32 {self.sRem}, 0")
        A("s_cbranch_scc1 L_k")
        C("---- phase change")
        self.stamp(2)
        self.xlane(self.mR[0], self.mR[1], "v_max_f32")
        A(f"s_lshr_b32 s2, {self.sW4}, 3")
        A(f"v_add_u32 v{T0}, s2, v{self.vLX}")
        A(f"ds_write_b64 v{T0}, {self.v2(self.mR[0])}")
        A(f"s_sub_u32 {self.sRd}, {self.sRd}, {self.sW4}")
        A(f"s_mov_b32 {self.sRem}, {self.sN}")
        A(f"s_mov_b32 {self.sIdx}, 0")
        A("s_waitcnt lgkmcnt(0)")
        A("s_barrier")
        A(f"buffer_load_dword v{self.vTag}, off, {self.sW}, 0 offset:3072")
        for s in range(4):
            A(f"ds_read_b64 {self.v2(self.LR+2*s)}, v{self.vLX} offset:{s*512}")
        def mfin():
            A("s_waitcnt lgkmcnt(0)")
            for qh in range(2):
                A(f"v_max3_f32 v{self.mR[qh]}, v{self.mR[qh]}, v{self.LR+qh}, v{self.LR+2+qh}")
                A(f"v_max3_f32 v{self.mR[qh]}, v{self.mR[qh]}, v{self.LR+4+qh}, v{self.LR+6+qh}")
                A(f"v_mul_f32 v{self.mC[qh]}, {self.sC}, v{self.mR[qh]}")
        A(f"s_cmp_eq_u32 {self.sRole}, 1")
        A("s_cbranch_scc1 L_ph1")
        A(f"buffer_load_dword v{self.vDum}, off, {self.sO}, 0")
        L("L_ph1")
        for r in range(0, 16, 2):
            A(f"v_mov_b64 {self.v2(self.AC+r)}, 0")
        mfin()
        L("L_ph2")
        sAh, sCnt, sEnd, sSk = "s78", "s79", "s30", "s31"
        AH, FA, CA = self.AH, self.fetchat, self.fetchat-self.chk
        assert FA <= AH-1 and CA >= 0
        A(f"s_mov_b32 {sAh}, 0"); A(f"s_mov_b32 {sCnt}, 3"); A(f"s_lshl_b32 {sEnd}, {self.sN}, 3"); A(f"s_mov_b32 {sSk}, 3")
        A(f"s_mov_b32 {self.sF}, 0")
        A(f"s_cmp_eq_u32 {self.sRole}, 1"); A(f"s_cselect_b32 s76, {AH+1}, -1")
        A("s_branch L_pc")
        L("L_vb")
        A("s_waitcnt lgkmcnt(0)")
        A("s_barrier")
        L("L_v")
        A(f"v_add_u32 v{T0+2}, {self.sP}, v{self.vPR}")
        for dt in range(2):
            A(f"v_add_u32 v{T0+dt}, {self.sRd}, v{self.vVR[dt]}")
        for ks in range(2):
            for qh in range(2):
                A(f"ds_read2st64_b64 {self.v4(self.PO+(ks*2+qh)*4)}, v{T0+2} offset0:{ks*4+qh} offset1:{ks*4+2+qh}")
        self.ringadv(self.sRd)
        A(f"s_add_u32 {self.sP}, {self.sP}, 0x1000"); A(f"s_and_b32 {self.sP}, {self.sP}, 0x7fff")
        A(f"s_sub_u32 {self.sRem}, {self.sRem}, 1")
        A(f"s_cmp_lg_u32 {sSk}, 0")
        A("s_cbranch_scc1 L_v1")
        A("s_waitcnt lgkmcnt(4)")
        A("s_barrier")
        self.stamp(4)
        L("L_v1")
        for ks in range(2):
            for dt in range(2):
                for b in range(2):
                    A(f"ds_read_b64_tr_b16 {self.v2(self.AO+(ks*2+dt)*4+2*b)}, v{T0+dt} offset:{(ks*2+b)*4096}")
        A(f"s_cmp_eq_u32 {self.sRem}, 0")
        for ks in range(2):
            for dt in range(2):
                A(f"s_waitcnt lgkmcnt({6-(ks*4+2*dt)})")
                for qh in range(2):
                    a = self.v4(self.acc(dt, qh))
                    A(f"v_mfma_f32_16x16x32_bf16 {a}, {self.v4(self.AO+(ks*2+dt)*4)}, {self.v4(self.PO+(ks*2+qh)*4)}, {a}")
        A("s_cbranch_scc1 L_done")
        A(f"s_cmp_lt_u32 {self.sRem}, {AH}")
        A("s_cbranch_scc1 L_ev")
        A(f"s_sub_u32 {sAh}, {sAh}, 1")
        if not self.notree:
            A(f"s_cmp_eq_u32 {self.sRem}, s76")
            A("s_cbranch_scc1 L_tree2")
            L("L_pc0")
        A(f"s_cmp_lg_u32 {sSk}, 0"); A(f"s_cselect_b32 {sCnt}, 1, 2")
        L("L_pc")
        self.pcalc()
        A(f"s_add_u32 {sAh}, {sAh}, 1")
        A(f"s_sub_u32 {sCnt}, {sCnt}, 1")
        A(f"s_cmp_lt_u32 {sAh}, {AH}")
        A(f"s_cselect_b32 {sCnt}, {sCnt}, 0")
        A(f"s_cmp_lg_u32 {sCnt}, 0")
        A("s_cbranch_scc1 L_pc")
        A(f"s_max_u32 {sSk}, {sSk}, 1"); A(f"s_sub_u32 {sSk}, {sSk}, 1")
        A(f"s_cmp_eq_u32 {sSk}, 2")
        A("s_cbranch_scc1 L_vb")
        A(f"s_cmp_lg_u32 {self.sIdx}, {sEnd}")
        A("s_cbranch_scc1 L_v")
        C("all P done: publish l")
        A("s_waitcnt vmcnt(0)")
        A(f"v_add_u32 v{self.vTag}, 1, v{self.vTag}")
        self.xlane(self.lS[0], self.lS[1], "v_add_f32")
        A(f"s_lshr_b32 s2, {self.sW4}, 3")
        A(f"v_add_u32 v{T0}, s2, v{self.vLX}")
        A(f"ds_write_b64 v{T0}, {self.v2(self.lS[0])} offset:2048")
        A("s_branch L_v")
        LR = self.LR
        LT = self.lS[0]
        fa = (self.PB+12, self.PB+14); fb = (self.PB+16, self.PB+18); tw = self.PB+20
        PBF = self.PB+24
        def factors():
            gw = self.G(8)
            A(f"v_mov_b32 v{tw}, v{gw}"); A(f"v_mov_b32 v{tw+1}, v{gw}")
            A("s_nop 1")
            A(f"v_permlane16_swap_b32 v{tw}, v{tw+1}")
            for qh in range(2):
                A(f"v_max_f32 v{tw+2+qh}, v{self.mC[qh]}, v{tw+qh}")
            for qh in range(2):
                A(f"v_sub_f32 v{fa[qh]}, v{self.mC[qh]}, v{tw+2+qh}")
                A(f"v_sub_f32 v{fb[qh]}, v{tw+qh}, v{tw+2+qh}")
            for qh in range(2):
                A(f"v_exp_f32 v{fa[qh]}, v{fa[qh]}"); A(f"v_exp_f32 v{fb[qh]}, v{fb[qh]}")
            for p in range(4):
                A(f"v_lshlrev_b32 v{PBF+2*p}, 16, v{self.G(p)}"); A(f"v_and_b32 v{PBF+2*p+1}, 0xffff0000, v{self.G(p)}")
            for qh in range(2):
                A(f"v_fma_f32 v{tw+qh}, v{LT+qh}, v{fa[qh]}, v{fb[qh]}")
            for qh in range(2):
                A(f"v_rcp_f32 v{tw+qh}, v{tw+qh}")
            for p in range(4, 8):
                A(f"v_lshlrev_b32 v{PBF+2*p}, 16, v{self.G(p)}"); A(f"v_and_b32 v{PBF+2*p+1}, 0xffff0000, v{self.G(p)}")
            for qh in range(2):
                A(f"v_mul_f32 v{fa[qh]}, v{fa[qh]}, v{tw+qh}"); A(f"v_mul_f32 v{fb[qh]}, v{fb[qh]}, v{tw+qh}")
            for p in range(8):
                qh = (p//2) % 2
                A(f"v_pk_mul_f32 {self.v2(PBF+2*p)}, {self.v2(PBF+2*p)}, {self.v2(fb[qh])} op_sel_hi:[1,0]")
        L("L_ev")
        A(f"s_cmp_eq_u32 {self.sRem}, {AH-1}")
        A("s_cbranch_scc1 L_tot")
        L("L_ev1")
        if self.stamps:
            A(f"s_cmp_lg_u32 {self.sRem}, 1"); A("s_cbranch_scc1 L_ev2"); self.stamp(3); L("L_ev2")
        A(f"s_cmp_eq_u32 {self.sRole}, 1")
        A("s_cbranch_scc1 L_v")
        if FA >= 1:
            A(f"s_cmp_eq_u32 {self.sRem}, {FA}")
            A("s_cbranch_scc1 L_fe")
        if CA >= 1:
            A(f"s_cmp_lg_u32 {self.sRem}, {CA}")
            A("s_cbranch_scc1 L_v")
            A("s_waitcnt vmcnt(0)")
            self.check(self.St)
            if self.nohand: A("s_branch L_fac")
            A("s_cbranch_vccz L_fac")
        else:
            A("s_branch L_v")
        L("L_fe")
        self.fetch()
        A("s_branch L_v")
        L("L_fac")
        factors()
        A(f"s_cmp_eq_u32 {self.sRem}, 0")
        A("s_cbranch_scc1 L_fin2")
        A(f"s_mov_b32 {self.sF}, 1")
        A("s_branch L_v")
        L("L_tot")
        for k in range(2):
            A(f"ds_read2st64_b64 {self.v4(LR+4*k)}, v{self.vLX} offset0:{4+2*k} offset1:{5+2*k}")
        A("s_waitcnt lgkmcnt(0)")
        A(f"v_pk_add_f32 {self.v2(LR)}, {self.v2(LR)}, {self.v2(LR+2)}")
        A(f"v_pk_add_f32 {self.v2(LR+4)}, {self.v2(LR+4)}, {self.v2(LR+6)}")
        A(f"v_pk_add_f32 {self.v2(LT)}, {self.v2(LR)}, {self.v2(LR+4)}")
        A(f"s_cmp_eq_u32 {self.sRole}, 1")
        A("s_cbranch_scc0 L_ev1")
        for qh in range(2):
            A(f"v_rcp_f32 v{fa[qh]}, v{LT+qh}")
        for qh in range(2):
            A(f"v_log_f32 v{LT+qh}, v{LT+qh}")
        for k in range(3):
            A(f"v_mov_b32 v{self.PB+4*k+3}, v{self.vTag}")
        A(f"v_pk_add_f32 {self.v2(LT)}, {self.v2(LT)}, {self.v2(self.mC[0])}")
        A("s_mov_b32 s2, 0xffff0000"); A("s_mov_b32 s3, 0xffff0000")
        A(f"v_cndmask_b32 v{self.G(8)}, v{LT}, v{LT+1}, s[2:3]")
        A("s_branch L_v")
        L("L_done")
        self.stamp(5)
        A(f"s_cmp_eq_u32 {self.sRole}, 1")
        A("s_cbranch_scc1 L_prod")
        A(f"s_cmp_eq_u32 {self.sF}, 1")
        A("s_cbranch_scc1 L_fin1")
        if FA == 0: self.fetch()
        A("s_mov_b32 s2, 0x200000")
        L("L_spin")
        A("s_waitcnt vmcnt(0)")
        self.check(self.St)
        tgt = "L_fac"
        if self.nohand: A(f"s_branch {tgt}")
        A(f"s_cbranch_vccz {tgt}")
        A("s_sub_u32 s2, s2, 1")
        A(f"s_cbranch_scc1 {tgt}")
        self.fetch()
        A("s_branch L_spin")
        if tgt == "L_got":
            L("L_got")
            factors()
        L("L_fin1")
        A("s_nop 2")
        L("L_fin2")
        self.stamp(6)
        for p in range(8):
            qh = (p//2) % 2
            a = self.AC+2*p
            A(f"v_pk_fma_f32 {self.v2(a)}, {self.v2(a)}, {self.v2(fa[qh])}, {self.v2(PBF+2*p)} op_sel_hi:[1,0,1]")
        OUT = self.AO
        for qh in range(2):
            for dt in range(2):
                for h in range(2):
                    a = self.acc(dt, qh)+2*h
                    A(f"v_cvt_pk_bf16_f32 v{OUT+qh*4+dt*2+h}, v{a}, v{a+1}")
        for qh in range(2):
            for h in range(2):
                A(f"v_permlane16_swap_b32 v{OUT+qh*4+h}, v{OUT+qh*4+2+h}")
            A(f"buffer_store_dwordx4 {self.v4(OUT+4*qh)}, v{self.vOut}, {self.sO}, {self.s4k if qh else '0'} offen {self.oflags}")
        A("s_mov_b64 exec, 1")
        A(f"buffer_store_dword v{self.vTag}, off, {self.sW}, 0 offset:3072")
        A("s_mov_b64 exec, -1")
        A("s_branch L_fin")
        L("L_prod")
        A("s_nop 4")
        for p in range(8):
            qh = (p//2) % 2
            a = self.AC+2*p
            A(f"v_pk_mul_f32 {self.v2(a)}, {self.v2(a)}, {self.v2(fa[qh])} op_sel_hi:[1,0]")
        for p in range(8):
            a = self.AC+2*p
            A(f"v_cvt_pk_bf16_f32 v{self.G(p)}, v{a}, v{a+1}")
            if p in (2, 5, 7):
                k = p//3
                if not self.nopart and k < self.nst: A(f"buffer_store_dwordx4 {self.v4(self.PB+4*k)}, v{self.vL16}, {self.sW}, 0 offen offset:{k*1024} {self.sflags}")
        self.stamp(6)
        self.mfin = mfin
    def tree(self):
        A, L = self.A, self.L
        T0 = self.T0; TS = 242
        L("L_kev")
        A(f"s_cmp_eq_u32 {self.sRem}, {self.sF}")
        A("s_cbranch_scc0 L_kev1")
        self.treeloads()
        A("s_branch L_k")
        L("L_kev1")
        A(f"s_cmp_eq_u32 {self.sRem}, 3")
        A("s_cbranch_scc0 L_kev2")
        A("s_waitcnt vmcnt(0)")
        A("s_branch L_k")
        L("L_kev2")
        A(f"s_cmp_eq_u32 {self.sRem}, 2")
        A("s_cbranch_scc0 L_k2")
        for s in range(4):
            A(f"v_add_u32 v{T0+s}, {TK}, v{self.vKR[s]}")
            A(f"ds_read_b128 {self.v4(self.AO+s*4)}, v{T0+s}")
        self.qk()
        big = -1.0e9 * math.sqrt(128.0)
        B0 = self.LR
        A(f"v_lshlrev_b32 v{B0}, 16, v{self.vMask}"); A(f"v_and_b32 v{B0+1}, 0xffff0000, v{self.vMask}")
        A(f"v_lshlrev_b32 v{B0+2}, 16, v{self.vMask+1}"); A(f"v_and_b32 v{B0+3}, 0xffff0000, v{self.vMask+1}")
        for r in range(4): A(f"v_sub_f32 v{B0+r}, 1.0, v{B0+r}")
        for r in range(4): A(f"v_mul_f32 v{B0+r}, 0x{f2u(big):08x}, v{B0+r}")
        for qh in range(2):
            for r in range(4):
                A(f"v_add_f32 v{TS+qh*4+r}, v{self.St+qh*4+r}, v{B0+r}")
            A(f"v_max3_f32 v{self.mR[qh]}, v{self.mR[qh]}, v{TS+qh*4}, v{TS+qh*4+1}")
            A(f"v_max3_f32 v{self.mR[qh]}, v{self.mR[qh]}, v{TS+qh*4+2}, v{TS+qh*4+3}")
        A("s_branch L_k")
        L("L_tree2")
        for dt in range(2):
            A(f"v_add_u32 v{T0+dt}, {TV}, v{self.vVR[dt]}")
            A(f"ds_read_b64_tr_b16 {self.v2(self.LR+2*dt)}, v{T0+dt}")
        for qh in range(2):
            for r in range(4):
                A(f"v_fma_f32 v{TS+qh*4+r}, v{TS+qh*4+r}, {self.sC}, -v{self.mC[qh]}")
        for r in range(4):
            for qh in range(2):
                A(f"v_exp_f32 v{TS+qh*4+r}, v{TS+qh*4+r}")
        A(f"s_cmp_eq_u32 {self.sWave}, 0")
        A("s_cselect_b32 s2, 1.0, 0")
        for r in range(4):
            for qh in range(2):
                A(f"v_fmac_f32 v{self.lS[qh]}, s2, v{TS+qh*4+r}")
        for qh in range(2):
            for h in range(2):
                A(f"v_cvt_pk_bf16_f32 v{self.LR+4+qh*2+h}, v{TS+qh*4+2*h}, v{TS+qh*4+2*h+1}")
        A("s_waitcnt lgkmcnt(0)")
        A("s_nop 0")
        for dt in range(2):
            for qh in range(2):
                a = self.v4(self.acc(dt,qh))
                A(f"v_mfma_f32_16x16x16_bf16 {a}, {self.v2(self.LR+2*dt)}, {self.v2(self.LR+4+2*qh)}, {a}")
        A("s_branch L_pc0")

    def gen(self):
        A, L, C = self.A, self.L, self.C
        self.o.append(HEADER + f"; @launch grid=(256,1,1) block=(320,1,1) lds={LDS}")
        self.o.append('.amdgcn_target "amdgcn-amd-amdhsa--gfx950"')
        self.o.append(".text"); self.o.append(f".globl {KNAME}"); self.o.append(".p2align 8")
        self.o.append(f".type {KNAME},@function"); L(KNAME)
        self.stamp(0)
        if self.padto: A("s_memrealtime s[96:97]")
        A("s_load_dwordx16 s[4:19], s[0:1], 0")
        A("s_load_dwordx2 s[20:21], s[0:1], 64")
        A("s_cmp_ge_u32 s2, 256")
        A("s_cbranch_scc1 L_end")
        A("v_lshrrev_b32 v8, 6, v0")
        A("v_and_b32 v0, 63, v0")
        A("s_lshr_b32 s3, s2, 3")
        A(f"v_readfirstlane_b32 {self.sWave}, v8")
        if self.mapmode == 0:
            A(f"s_xor_b32 {self.sRole}, s2, s3"); A(f"s_and_b32 {self.sRole}, {self.sRole}, 1")
            A(f"s_lshr_b32 {self.sT}, s2, 1"); A(f"s_xor_b32 {self.sPair}, s2, {self.sT}"); A(f"s_and_b32 {self.sPair}, {self.sPair}, 1")
            A(f"s_and_b32 {self.sT}, {self.sT}, 2"); A(f"s_or_b32 {self.sPair}, {self.sPair}, {self.sT}")
            A(f"s_lshl2_add_u32 {self.sPair}, s3, {self.sPair}")
            A("s_bitcmp1_b32 s2, 3")
        elif self.mapmode == 1:
            A(f"s_and_b32 {self.sRole}, s3, 1")
            A(f"s_lshr_b32 {self.sPair}, s2, 4"); A(f"s_and_b32 {self.sT}, s2, 7"); A(f"s_lshl3_add_u32 {self.sPair}, {self.sPair}, {self.sT}")
            A("s_bitcmp1_b32 s2, 0")
        else:
            A(f"s_xor_b32 {self.sRole}, s2, s3"); A(f"s_and_b32 {self.sRole}, {self.sRole}, 1")
            A(f"s_lshr_b32 {self.sPair}, s2, 1")
            A("s_bitcmp1_b32 s2, 3")
        A(f"s_cselect_b32 s22, {self.NC1}, {self.NC0}")
        A(f"s_sub_u32 {self.sN}, 32, s22")
        A(f"s_cmp_eq_u32 {self.sRole}, 1")
        A(f"s_cselect_b32 {self.sN}, {self.sN}, s22")
        A("s_cselect_b32 s22, s22, 0")
        A(f"s_lshl_b32 s26, {self.sN}, 14")
        A("s_lshl_b32 s22, s22, 14")
        A(f"s_lshl_b32 {self.sT}, {self.sPair}, 19")
        A(f"s_add_u32 s22, s22, {self.sT}")
        A("v_lshrrev_b32 v9, 4, v0")
        A("v_lshlrev_b32 v10, 1, v9"); A("v_xor_b32 v10, v10, v0"); A("v_and_b32 v10, 15, v10")
        A(f"s_sub_u32 {self.sWave}, {self.sWave}, 1")
        A("s_cbranch_scc0 L_comp")
        self.loader()
        L("L_comp")
        self.o.append("@L2PF")
        A(f"s_lshl_b32 {self.sW4}, {self.sWave}, 12")
        A("v_lshlrev_b32 v1, 8, v9"); A("v_lshl_add_u32 v1, v10, 4, v1")
        C("mask offset: (q%8)*16 + g*8 (+128 for g>=2: out of range)")
        A("v_and_b32 v2, 7, v0"); A("v_lshlrev_b32 v2, 4, v2"); A("v_lshl_add_u32 v2, v9, 3, v2")
        A("v_lshrrev_b32 v11, 5, v0"); A("v_lshl_add_u32 v2, v11, 7, v2")
        C("K/Q read lane bases: rho*256 + ((4s+g)^(2*(rho%8)))*16")
        A("v_and_b32 v10, 15, v0"); A("v_and_b32 v11, 7, v0"); A("v_lshlrev_b32 v11, 1, v11"); A("v_xor_b32 v11, v11, v9")
        A("v_lshlrev_b32 v3, 8, v10"); A("v_lshl_add_u32 v3, v11, 4, v3")
        for s in range(1, 4): A(f"v_xor_b32 v{3+s}, {64*s}, v3")
        C("out offset: q*256 + wave*64 + (row&1)*32 + (row>>1)*16")
        A(f"v_lshlrev_b32 v{self.vOut}, 8, v10"); A("v_and_b32 v11, 1, v9"); A(f"v_lshl_add_u32 v{self.vOut}, v11, 5, v{self.vOut}")
        A("v_lshrrev_b32 v11, 1, v9"); A(f"v_lshl_add_u32 v{self.vOut}, v11, 4, v{self.vOut}")
        A(f"s_lshl_b32 s2, {self.sWave}, 6"); A(f"v_add_u32 v{self.vOut}, s2, v{self.vOut}")
        C("V transposed-read lane bases: row=l/4, c=l%4: row*256 + ((4w+2dt+c/2)^(2*(row%8)))*16 + (c%2)*8")
        A("v_lshrrev_b32 v10, 2, v0"); A("v_and_b32 v11, 7, v10"); A("v_lshlrev_b32 v11, 1, v11")
        A("v_bfe_u32 v12, v0, 1, 1"); A(f"s_lshl_b32 s2, {self.sWave}, 2"); A("v_add_u32 v12, s2, v12"); A("v_xor_b32 v11, v11, v12")
        A("v_lshlrev_b32 v7, 8, v10"); A("v_lshl_add_u32 v7, v11, 4, v7"); A("v_and_b32 v11, 1, v0"); A("v_lshl_add_u32 v7, v11, 3, v7")
        A("v_xor_b32 v8, 32, v7")
        A(f"v_lshlrev_b32 v{self.vL16}, 4, v0")
        A("v_lshlrev_b32 v11, 3, v0")
        A(f"v_add_u32 v{self.vPR}, {PR}, v11")
        A(f"s_lshr_b32 s2, {self.sW4}, 2"); A(f"v_add_u32 v{self.vPW}, s2, v{self.vPR}")
        A(f"v_add_u32 v{self.vLX}, {MX}, v11")
        A("s_waitcnt lgkmcnt(0)")
        A(f"s_lshl_b32 {self.sT}, {self.sPair}, 11")
        self.srd(36, 10, 11, self.sT, 2048)
        self.srd(40, 12, 13, self.sT, 2048)
        A(f"s_lshr_b32 {self.sT}, {self.sPair}, 3"); A(f"s_lshl_b32 {self.sT}, {self.sT}, 7")
        self.srd(44, 14, 15, self.sT, 128)
        A(f"s_lshl_b32 s3, {self.sPair}, 13")
        self.srd(48, 16, 17, "s3", 8192)
        A(f"s_lshl2_add_u32 {self.sT}, {self.sPair}, {self.sWave}"); A(f"s_lshl_b32 {self.sT}, {self.sT}, 12")
        self.srd(52, 20, 21, self.sT, 4096)
        A(f"s_movk_i32 {self.s4k}, 0x1000")
        c = (128 ** -0.5) * math.log2(math.e)
        A(f"s_mov_b32 {self.sC}, 0x{f2u(c):08x}")
        A(f"s_mov_b32 {self.sRem}, {self.sN}")
        A(f"s_mov_b32 {self.sRd}, {self.sW4}")
        A(f"s_mov_b32 {self.sIdx}, 0"); A(f"s_mov_b32 {self.sP}, 0"); A(f"s_mov_b32 {self.sPw}, 0")
        A(f"s_sub_u32 {self.sF}, {self.sN}, {self.treeat+1}")
        A(f"s_cmp_eq_u32 {self.sRole}, 1")
        A(f"s_cselect_b32 {self.sF}, {self.sF}, -1")
        for qh in range(2):
            A(f"v_mov_b32 v{self.mR[qh]}, 0x{f2u(-3.0e38):08x}")
            A(f"v_mov_b32 v{self.lS[qh]}, 0")
        for s in range(4):
            A(f"v_add_u32 v{self.T0+s}, {QS}, v{self.vKR[s]}")
        A(f"s_mov_b32 s76, {self.sWave}")
        self.compute()
        L("L_fin")
        if self.padto:
            L("L_pad")
            A("s_memrealtime s[98:99]"); A("s_waitcnt lgkmcnt(0)"); A("s_sub_u32 s98, s98, s96")
            A(f"s_cmp_lt_u32 s98, {self.padto}"); A("s_cbranch_scc1 L_pad")
        if self.stamps:
            A("s_waitcnt vmcnt(0)")
            self.stamp(7)
            A("s_getreg_b32 s3, hwreg(HW_REG_XCC_ID)")
            A("s_waitcnt lgkmcnt(0)")
            A("v_mov_b32 v10, 0")
            for k in range(self.nstamp):
                A(f"v_writelane_b32 v10, s{80+2*k}, {k}")
            A("v_writelane_b32 v10, s2, 12")
            A("v_writelane_b32 v10, s3, 14")
            A(f"v_writelane_b32 v10, {self.sRole}, 15")
            A(f"v_writelane_b32 v10, {self.sPair}, 13")
            A(f"s_lshl_b32 s2, {self.sPair}, 1"); A(f"s_add_u32 s2, s2, {self.sRole}"); A("s_lshl_b32 s2, s2, 2"); A(f"s_add_u32 s2, s2, {self.sWave}")
            A("s_lshl_b32 s2, s2, 6"); A("s_add_u32 s2, s2, 0x800000")
            self.srd(52, 20, 21, None, 0x1000000)
            A("v_lshlrev_b32 v11, 2, v0")
            A("v_cmp_gt_u32 vcc, 16, v0")
            A("s_and_saveexec_b64 s[22:23], vcc")
            A(f"buffer_store_dword v10, v11, {self.sW}, s2 offen")
        L("L_end")
        A("s_endpgm")
        if not self.notree: self.tree()
        self.o.append('.section .rodata,"a"'); self.o.append(".p2align 6"); self.o.append(f".amdhsa_kernel {KNAME}")
        for d in ("next_free_vgpr 252", "next_free_sgpr 102", "accum_offset 252", "group_segment_fixed_size 0", "kernarg_size 72",
                  "user_sgpr_count 2", "user_sgpr_kernarg_segment_ptr 1", "system_sgpr_workgroup_id_x 1"):
            self.o.append("  .amdhsa_"+d)
        self.o.append(".end_amdhsa_kernel")
        return self.finish()

def sizes_of(lines):
    import subprocess, re, tempfile, os
    src = "\n".join(lines)+"\n"
    d = tempfile.mkdtemp()
    open(d+"/a.s","w").write(src)
    subprocess.run(["clang","-x","assembler","-target","amdgcn-amd-amdhsa","-mcpu=gfx950","-c",d+"/a.s","-o",d+"/a.o"],check=True)
    dis = subprocess.run(["llvm-objdump","-d","--mcpu=gfx950",d+"/a.o"],capture_output=True,text=True).stdout
    sz = []
    for l in dis.splitlines():
        m = re.search(r"// ([0-9A-F]{12}): ((?:[0-9A-F]{8} ?)+)", l)
        if m: sz.append(4*len(m.group(2).split()))
    return sz
def isinstr(l):
    return l.startswith("  ") and not l.startswith("  ;") and not l.startswith("  .")

def finish(self):
    def build(nseg, hops_at=None):
        out = []
        for l in self.o:
            if l == "@WARMCALL":
                if self.warm:
                    out.append(f"  s_cmp_ge_u32 s76, {nseg}")
                    out.append("  s_cbranch_scc1 L_hskip")
                    out.append("  s_mov_b64 exec, 0")
                    for k in range(nseg):
                        out.append(f"  s_cmp_eq_u32 s76, {k}")
                        out.append(f"  s_cbranch_scc1 L_h{k*self.seg}")
                    out.append("L_hret:")
                    out.append("  s_mov_b64 exec, -1")
                    out.append("  s_add_u32 s76, s76, 4")
                    out.append("L_hskip:")
                    out.append("@HOPON")
            elif l == "@L2PF": pass
            else: out.append(l)
        return out
    if not self.warm:
        return "\n".join(l for l in build(0) if not l.startswith("@"))+"\n"
    nseg = 1
    while True:
        base = build(nseg)
        tmp = []
        for l in base:
            if l.startswith("@"): continue
            tmp.append(l)
            if l == "L_hret:": tmp += [f"L_h{k*self.seg}:" for k in range(nseg)]
        sz = sizes_of(tmp)
        res = []; addr = 0; k = 0; nh = 0; on = False; lastline = -1; intext = True
        for l in base:
            if l == "@HOPON": on = True; lastline = addr//self.warm if res and res[-1] == "L_hskip:" else -1; continue
            if l == "@HOPOFF": on = False; continue
            if l.startswith(".section"): intext = False
            if intext and isinstr(l):
                if on and addr//self.warm != lastline:
                    lastline = addr//self.warm
                    res.append(("hop", nh)); nh += 1; addr += 4
                addr += sz[k]; k += 1
            res.append(l)
        need = -(-nh//self.seg)
        if need <= nseg: break
        nseg = need
    start = res.index("L_hret:")
    order = [x[1] for x in res[start:] if isinstance(x, tuple)] + [x[1] for x in res[:start] if isinstance(x, tuple)]
    out = []
    for x in res:
        if isinstance(x, tuple):
            p = order.index(x[1])
            out.append(f"L_h{p}:")
            last = (p+1) % self.seg == 0 or p+1 == nh
            out.append(f"  s_cbranch_execz {'L_hret' if last else 'L_h%d' % (p+1)}")
        else:
            out.append(x)
            if x == "L_hret:":
                out += [f"L_h{k*self.seg}:" for k in range(nseg) if k*self.seg >= nh]
    return "\n".join(out)+"\n"
Gen.finish = finish

if __name__ == "__main__":
    out = sys.argv[1]
    kw = eval("dict(" + (sys.argv[2] if len(sys.argv) > 2 else "") + ")")
    open(out, "w").write(Gen(**kw).gen())
```

```python
import sys, math, struct
KNAME = "standalone__tree_speculative_verify_tree_attention_over_candidate_token_tree__sampling_kernel"
HEADER = """; Kernarg layout for this problem (72 bytes, ptrs only, base s[0:1]):
"""
def f2u(x): return struct.unpack("<I", struct.pack("<f", x))[0]
RINGB = 81920
PR, QS, TK, TV, MX, LX, LDS = 81920, 81920, 147456, 151552, 155648, 157696, 159744
N = 16

class Gen:
    def __init__(self, flags="nt", stamps=False, padto=0, mapmode=3, D=20, DV=None, nb=0, D2=32, treeat=5,
                 nohand=False, notree=False, noq=False, nopart=False, prio=3, oflags="", warm=128, seg=2,
                 frac=(0,)*8, prof=False, f0=3, forcelate=False, sfl='sc1', lfl='sc1', dg='DFHL', catch=6, forcefar=False):
        self.forcefar = forcefar; pc0 = pcn = 2; early = True
        self.sfl, self.lfl, self.dg, self.pc0, self.pcn, self.catch, self.early = sfl, lfl, dg, pc0, pcn, catch, early
        self.o = []
        self.flags, self.stamps, self.padto, self.mapmode = flags, stamps, padto, mapmode
        self.D, self.DV, self.nb, self.D2, self.treeat = D, DV or D, nb, D2, treeat
        self.nohand, self.notree, self.noq, self.nopart, self.prio = nohand, notree, noq, nopart, prio
        self.oflags, self.warm, self.seg, self.frac, self.prof, self.f0, self.forcelate = oflags, warm, seg, frac, prof, f0, forcelate
        assert 17 <= D <= 31 and 17 <= self.DV <= 31 and 17 <= D2 <= 32
        self.uid = 0
    def A(self, s): self.o.append("  "+s)
    def L(self, s): self.o.append(s+":")
    def C(self, s): self.o.append("  ; "+s)
    vKR = (3, 4, 5, 6); vVR = 7; vTR = 8; vPR = 9; vPW = 10; vTag = 11
    mR = (12, 13); mC = (14, 15); lS = (16, 17); T0 = 18
    St = 24; SS = 32; AO = 160; PO = 176; QR = 176; AC = 208; LR = 216; PK = 224
    vL16 = 228; vDum = 229; vMask = 230; vLX = 232; vOut = 233; vFo = 234
    TS = 236
    fa = (244, 246); FM = 248
    mT = 252; lT = 254; ft = (56, 58)
    DM = 32; PBF = 36; fb = (44, 46); tw = 48; GM = 52
    @staticmethod
    def v4(r): return f"v[{r}:{r+3}]"
    @staticmethod
    def v2(r): return f"v[{r}:{r+1}]"
    def Q(self, qh, s): return self.v4(self.QR + (qh*4+s)*4)
    sX, sQ, sKT, sVT, sM, sO, sW = "s[24:27]", "s[32:35]", "s[36:39]", "s[40:43]", "s[44:47]", "s[48:51]", "s[52:55]"
    sVb = (28, 29)
    sPair, sRole, sWave, sSk, sRem, sA, sM0, sRd, sIdx, sP, sW4, sT = ["s%d" % i for i in range(60, 72)]
    sC, s4k, sF, sPw, sCnt, sSend, sRecv = "s72", "s73", "s74", "s75", "s79", "s30", "s31"
    nstamp = 0
    def stamp(self, idx):
        if self.stamps:
            r = 80 + 2*idx
            self.nstamp = max(self.nstamp, idx+1)
            self.A(f"s_memrealtime s[{r}:{r+1}]")
    def ringadv(self, r):
        self.A(f"s_add_u32 {r}, {r}, 0x4000")
        self.A(f"s_cmp_ge_u32 {r}, {RINGB}")
        self.A(f"s_cselect_b32 s77, {RINGB}, 0")
        self.A(f"s_sub_u32 {r}, {r}, s77")
    def xlane(self, a, b, op):
        A = self.A
        A("s_nop 1")
        A(f"v_permlane32_swap_b32 v{a}, v{b}")
        A(f"{op} v{a}, v{a}, v{b}")
        A(f"v_mov_b32 v{b}, v{a}")
        A("s_nop 1")
        A(f"v_permlane16_swap_b32 v{a}, v{b}")
        A(f"{op} v{a}, v{a}, v{b}")
        A(f"v_mov_b32 v{b}, v{a}")
        A("s_nop 1")
        A(f"v_permlane32_swap_b32 v{a}, v{b}")
    def srd(self, d, lo, hi, add, nbytes):
        A = self.A
        if add is None:
            A(f"s_mov_b32 s{d}, s{lo}"); A(f"s_mov_b32 s{d+1}, s{hi}")
        else:
            A(f"s_add_u32 s{d}, s{lo}, {add}"); A(f"s_addc_u32 s{d+1}, s{hi}, 0")
        A(f"s_mov_b32 s{d+2}, {nbytes}")
        A(f"s_mov_b32 s{d+3}, 0x20000")
    def qk(self, dst=None):
        A = self.A
        dst = self.St if dst is None else dst
        for s in range(4):
            A(f"s_waitcnt lgkmcnt({3-s})")
            for qh in range(2):
                d = self.v4(dst+qh*4)
                A(f"v_mfma_f32_16x16x32_bf16 {d}, {self.v4(self.AO+s*4)}, {self.Q(qh,s)}, {'0' if s == 0 else d}")
    def pcalc(self):
        A = self.A
        A(f"s_set_gpr_idx_on {self.sIdx}, gpr_idx(SRC0)")
        for qh in range(2):
            for r in range(4):
                A(f"v_fma_f32 v{self.St+qh*4+r}, v{self.SS+qh*4+r}, {self.sC}, -v{self.mC[qh]}")
        A("s_set_gpr_idx_off")
        for r in range(4):
            for qh in range(2):
                A(f"v_exp_f32 v{self.St+qh*4+r}, v{self.St+qh*4+r}")
        A(f"s_add_u32 {self.sIdx}, {self.sIdx}, 8")
        for r in range(4):
            for qh in range(2):
                A(f"v_add_f32 v{self.lS[qh]}, v{self.lS[qh]}, v{self.St+qh*4+r}")
        for qh in range(2):
            for h in range(2):
                A(f"v_cvt_pk_bf16_f32 v{self.PK+qh*2+h}, v{self.St+qh*4+2*h}, v{self.St+qh*4+2*h+1}")
        A(f"ds_write2st64_b64 v{self.vPW}, {self.v2(self.PK)}, {self.v2(self.PK+2)} offset0:0 offset1:1")
        A(f"v_add_u32 v{self.vPW}, 0x1000, v{self.vPW}")

    def ldk(self, i):
        self.A(f"buffer_load_dwordx4 v{1+i%2}, {self.sX}, {self.sA} offen offset:{i*256} {self.flags} lds")
    def ldv(self, j):
        self.A(f"buffer_load_dwordx4 v{5+j//8}, {self.sX}, {self.sA} offen offset:{(j%8)*512} {self.flags} lds")
    def m0k(self, i): self.A(f"s_mov_b32 m0, {self.sM0}" if i == 0 else "s_addk_i32 m0, 0x300")
    def m0v(self, j): self.A(f"s_mov_b32 m0, {self.sM0}" if j == 0 else ("s_addk_i32 m0, 0x1200" if j == 8 else "s_addk_i32 m0, 0x200"))
    def pstamp(self):
        if self.prof:
            A = self.A
            A("s_waitcnt lgkmcnt(0)"); A("s_mov_b32 m0, s79"); A("v_writelane_b32 v12, s44, m0"); A("s_add_u32 s79, s79, 1"); A("s_memrealtime s[44:45]")
    def gated(self, D, m0, ld, first=None):
        A, L = self.A, self.L
        fr = any(self.frac)
        if fr:
            A(f"s_bitcmp1_b32 s78, {self.sRem}"); A("s_cselect_b64 vcc, -1, 0")
        for i in range(16):
            m0(i)
            if i == D-17:
                A(f"s_waitcnt vmcnt({D-1})")
                ld(i)
                if first:
                    A(f"s_cmp_eq_u32 {self.sRem}, {2*N-1}")
                    A(f"s_cbranch_scc1 {first}")
                A("s_barrier")
                if first: L(first)
            else:
                if fr:
                    self.uid += 1
                    A(f"s_waitcnt vmcnt({D})")
                    A(f"s_cbranch_vccnz L_g{self.uid}")
                A(f"s_waitcnt vmcnt({D-1})")
                if fr: L(f"L_g{self.uid}")
                ld(i)
        self.pstamp()
    def loader(self):
        A, L, C = self.A, self.L, self.C
        L("L_loader")
        C("K source lane offsets: g*4096 + (slot ^ 2g ^ 8*(i%2))*16 ; row i through the immediate offset")
        A("v_lshlrev_b32 v1, 12, v9"); A("v_lshl_add_u32 v1, v10, 4, v1")
        A("v_xor_b32 v2, 0x80, v1")
        if self.prio: A(f"s_setprio {self.prio}")
        A(f"s_mov_b32 {self.sA}, 0"); A("s_mov_b32 m0, 0")
        A("s_mov_b32 s26, 0x40000"); A("s_mov_b32 s27, 0x20000")
        A("s_waitcnt lgkmcnt(0)")
        A("s_add_u32 s24, s6, s22"); A("s_addc_u32 s25, s7, 0")
        fill = [f"s_lshl_b32 s3, {self.sPair}, 13", "s_add_u32 s32, s4, s3", "s_addc_u32 s33, s5, 0", "s_mov_b32 s34, 8192", "s_mov_b32 s35, 0x20000",
                "v_lshlrev_b32 v3, 8, v9", "v_lshl_add_u32 v3, v10, 4, v3", "v_xor_b32 v4, 0x80, v3", f"s_movk_i32 {self.s4k}, 0x1000",
                f"s_mov_b32 {self.sM0}, 0", f"s_mov_b32 {self.sRem}, {2*N-1}"]
        for i in range(16):
            self.ldk(i)
            if i < 15:
                A("s_addk_i32 m0, 0x300")
                if fill:
                    x = fill.pop(0); A(x)
                    if x.startswith("s_add_u32"): A(fill.pop(0))
                else: A("s_nop 0")
        if self.prof: A("s_memrealtime s[44:45]"); A("s_mov_b32 s79, 0"); A("s_mov_b32 s23, s2")
        if not self.noq:
            for h in range(2):
                A(f"s_mov_b32 m0, {QS+h*4096}"); A("s_nop 0")
                for x in range(4):
                    A(f"buffer_load_dwordx4 v{3+x%2}, {self.sQ}, {self.s4k if h else '0'} offen offset:{x*1024} lds")
        C("V source lane offsets: u=l/8: (u%4)*4096 + (u/4)*256 + ((l%8) ^ (u&6))*16")
        A("v_lshrrev_b32 v7, 3, v0"); A("v_and_b32 v8, 6, v7"); A("v_xor_b32 v8, v8, v0"); A("v_and_b32 v8, 7, v8"); A("v_lshlrev_b32 v8, 4, v8")
        A("v_and_b32 v5, 3, v7"); A("v_lshl_add_u32 v5, v5, 12, v8"); A("v_lshrrev_b32 v7, 2, v7"); A("v_lshl_add_u32 v5, v7, 8, v5")
        A("v_add_u32 v6, 0x4000, v5")
        if any(self.frac):
            A("s_getreg_b32 s2, hwreg(HW_REG_XCC_ID)"); A("s_and_b32 s2, s2, 7"); A("s_mov_b32 s78, 0")
            for x in range(8):
                m = 0
                for b in range(32):
                    if int((b+1)*self.frac[x]+1e-9) != int(b*self.frac[x]+1e-9): m |= 1 << b
                if m:
                    A(f"s_cmp_eq_u32 s2, {x}"); A(f"s_cselect_b32 s78, 0x{m:08x}, s78")
        L("L_lk")
        A(f"s_add_u32 {self.sA}, {self.sA}, 0x4000")
        self.ringadv(self.sM0)
        self.gated(self.D, self.m0k, self.ldk, first="L_lkb")
        A(f"s_sub_u32 {self.sRem}, {self.sRem}, 1")
        A(f"s_cmp_lg_u32 {self.sRem}, {N}")
        A("s_cbranch_scc1 L_lk")
        self.o.append("@HOPON")
        A("s_add_u32 s24, s8, s22"); A("s_addc_u32 s25, s9, 0")
        A(f"s_lshl_b32 {self.sT}, {self.sRole}, 7")
        A(f"s_xor_b32 {self.sA}, {self.sT}, 0x80")
        L("L_lv")
        self.ringadv(self.sM0)
        self.gated(self.DV, self.m0v, self.ldv)
        A(f"s_add_u32 {self.sA}, {self.sA}, 0x8000")
        A(f"s_sub_u32 {self.sRem}, {self.sRem}, 1")
        A(f"s_cmp_eq_u32 {self.sRem}, {N//2}")
        A(f"s_cselect_b32 {self.sA}, {self.sT}, {self.sA}")
        A(f"s_cmp_lg_u32 {self.sRem}, {self.nb}")
        A("s_cbranch_scc1 L_lv")
        sig = -2; nb = self.nb
        for st in range(nb):
            self.ringadv(self.sM0)
            for i in range(16):
                j = st*16+i
                self.m0v(i)
                A(f"s_waitcnt vmcnt({self.D2-1})")
                self.ldv(i)
                if j - self.D2 == sig*16+15:
                    A("s_barrier"); sig += 1
            A(f"s_add_u32 {self.sA}, {self.sA}, 0x8000")
            self.pstamp()
        while sig < nb:
            A(f"s_waitcnt vmcnt({(nb-1-sig)*16})")
            self.pstamp()
            A("s_barrier"); sig += 1
        if self.prof:
            self.pstamp()
            A("v_writelane_b32 v12, s80, 60"); A(f"v_writelane_b32 v12, {self.sRole}, 61"); A("s_getreg_b32 s3, hwreg(HW_REG_XCC_ID)"); A("v_writelane_b32 v12, s3, 62")
            A("v_writelane_b32 v12, s23, 63")
            self.srd(52, 20, 21, None, 0x1000000)
            A(f"s_lshl_b32 s2, {self.sPair}, 1"); A(f"s_add_u32 s2, s2, {self.sRole}"); A("s_lshl_b32 s2, s2, 8"); A("s_add_u32 s2, s2, 0x810000")
            A("v_lshlrev_b32 v13, 2, v0")
            A(f"buffer_store_dword v12, v13, {self.sW}, s2 offen")
        A("s_endpgm")
        self.o.append("@HOPOFF")

    def compute(self):
        A, L, C = self.A, self.L, self.C
        T0, LR, TS, St = self.T0, self.LR, self.TS, self.St
        LT = self.lS[0]
        fa, fb, tw, FM, GM, DM, PBF = self.fa, self.fb, self.tw, self.FM, self.GM, self.DM, self.PBF
        C("---- K phase")
        L("L_k")
        self.o.append("@WARMCALL")
        A("s_barrier")
        A(f"s_cmp_lg_u32 {self.sIdx}, 0")
        A("s_cbranch_scc1 L_k1")
        self.stamp(1)
        for qh in range(2):
            for s in range(4):
                A(f"ds_read_b128 {self.Q(qh,s)}, v{T0+s} offset:{qh*4096}")
        L("L_k1")
        for s in range(4):
            A(f"v_add_u32 v{T0+s}, {self.sRd}, v{self.vKR[s]}")
            A(f"ds_read_b128 {self.v4(self.AO+s*4)}, v{T0+s}")
        self.ringadv(self.sRd)
        self.qk()
        A("s_nop 7")
        for h in range(2):
            for qh in range(2):
                A(f"v_max3_f32 v{self.mR[qh]}, v{self.mR[qh]}, v{St+qh*4+2*h}, v{St+qh*4+2*h+1}")
        A(f"s_set_gpr_idx_on {self.sIdx}, gpr_idx(DST)")
        for k in range(8):
            A(f"v_mov_b32 v{self.SS+k}, v{St+k}")
        A("s_set_gpr_idx_off")
        A(f"s_add_u32 {self.sIdx}, {self.sIdx}, 8")
        A(f"s_sub_u32 {self.sRem}, {self.sRem}, 1")
        for rem, lab in ((11, "L_e0"), (9, "L_e1"), (8, "L_e2"), (7, "L_e3"), (6, "L_e4"), (3, "L_e5")):
            A(f"s_cmp_eq_u32 {self.sRem}, {rem}")
            A(f"s_cbranch_scc1 {lab}")
        A(f"s_cmp_lg_u32 {self.sRem}, 0")
        A("s_cbranch_scc1 L_k")
        C("---- phase change")
        self.stamp(2)
        self.xlane(self.mR[0], self.mR[1], "v_max_f32")
        A(f"s_lshr_b32 s2, {self.sW4}, 3")
        A(f"v_add_u32 v{T0}, s2, v{self.vLX}")
        A(f"ds_write_b64 v{T0}, {self.v2(self.mR[0])}")
        A(f"s_sub_u32 {self.sRd}, {self.sRd}, {self.sW4}")
        A(f"s_mov_b32 {self.sRem}, {N}")
        A(f"s_mov_b32 {self.sIdx}, 0")
        A(f"s_mov_b32 {self.sCnt}, {self.pc0}"); A(f"s_mov_b32 {self.sF}, 0")
        for r in range(0, 8, 2):
            A(f"v_mov_b64 {self.v2(self.AC+r)}, 0")
        A("s_waitcnt lgkmcnt(0)")
        A("s_barrier")
        for k in range(2):
            A(f"ds_read2st64_b64 {self.v4(LR+4*k)}, v{self.vLX} offset0:{2*k} offset1:{2*k+1}")
        A("s_waitcnt lgkmcnt(0)")
        for qh in range(2):
            A(f"v_max3_f32 v{self.mR[qh]}, v{LR+qh}, v{LR+2+qh}, v{LR+4+qh}")
            A(f"v_max_f32 v{self.mR[qh]}, v{self.mR[qh]}, v{LR+6+qh}")
            A(f"v_mul_f32 v{self.mC[qh]}, {self.sC}, v{self.mR[qh]}")
        L("L_pc")
        self.pcalc()
        A(f"s_sub_u32 {self.sCnt}, {self.sCnt}, 1")
        A(f"s_cmp_lg_u32 {self.sCnt}, 0")
        A("s_cbranch_scc1 L_pc")
        A(f"s_mov_b32 {self.sCnt}, {self.pcn}")
        A(f"s_cmp_lg_u32 {self.sIdx}, {8*N}")
        A("s_cbranch_scc1 L_vb")
        C("all P done: publish this wave's l")
        self.xlane(self.lS[0], self.lS[1], "v_add_f32")
        A(f"s_lshr_b32 s2, {self.sW4}, 3")
        A(f"v_add_u32 v{T0}, s2, v{self.vLX}")
        A(f"ds_write_b64 v{T0}, {self.v2(self.lS[0])} offset:2048")
        L("L_vb")
        A(f"s_mov_b32 {self.sSk}, 1")
        A("s_waitcnt lgkmcnt(0)")
        A("s_barrier")
        L("L_v")
        A(f"v_add_u32 v{T0+1}, {self.sP}, v{self.vPR}")
        A(f"v_add_u32 v{T0}, {self.sRd}, v{self.vVR}")
        for ks in range(4):
            for qh in range(2):
                A(f"ds_read2st64_b64 {self.v4(self.PO+(ks*2+qh)*4)}, v{T0+1} offset0:{ks*4+qh} offset1:{ks*4+2+qh}")
        self.ringadv(self.sRd)
        A(f"s_add_u32 {self.sP}, {self.sP}, 0x2000"); A(f"s_and_b32 {self.sP}, {self.sP}, 0xffff")
        A(f"s_sub_u32 {self.sRem}, {self.sRem}, 1")
        A(f"s_cmp_lg_u32 {self.sSk}, 0")
        A(f"s_mov_b32 {self.sSk}, 0")
        A("s_waitcnt lgkmcnt(7)")
        A("s_cbranch_scc1 L_v1")
        A("s_barrier")
        self.stamp(4)
        L("L_v1")
        for ks in range(4):
            for b in range(2):
                A(f"ds_read_b64_tr_b16 {self.v2(self.AO+ks*4+2*b)}, v{T0} offset:{(ks*2+b)*2048}")
        A(f"s_cmp_eq_u32 {self.sRem}, 0")
        for ks in range(4):
            A(f"s_waitcnt lgkmcnt({6-2*ks})")
            for qh in range(2):
                a = self.v4(self.AC+4*qh)
                A(f"v_mfma_f32_16x16x32_bf16 {a}, {self.v4(self.AO+ks*4)}, {self.v4(self.PO+(ks*2+qh)*4)}, {a}")
        A("s_cbranch_scc1 L_done")
        A(f"s_cmp_le_u32 {self.sRem}, {self.f0}")
        A("s_cbranch_scc1 L_sm")
        assert self.f0 < self.catch < 7
        A(f"s_cmp_ge_u32 {self.sRem}, 9")
        A("s_cbranch_scc1 L_pc")
        A(f"s_cmp_eq_u32 {self.sRem}, 8")
        A("s_cbranch_scc1 L_sw")
        A(f"s_cmp_eq_u32 {self.sRem}, 7")
        A("s_cbranch_scc1 L_flag")
        A(f"s_cmp_eq_u32 {self.sRem}, {self.catch}")
        A(f"s_cselect_b32 {self.sSk}, 1, 0")
        A("s_branch L_v")
        L("L_sw")
        C("end of the partner's column half: l total, header [w0, tag, w1, tag], send the data, restart the accumulators")
        for k in range(2):
            A(f"ds_read2st64_b64 {self.v4(LR+4*k)}, v{self.vLX} offset0:{4+2*k} offset1:{5+2*k}")
        A(f"v_mov_b32 v{FM+1}, v{self.vTag}"); A(f"v_mov_b32 v{FM+3}, v{self.vTag}")
        A("s_waitcnt lgkmcnt(0)")
        A(f"v_pk_add_f32 {self.v2(LR)}, {self.v2(LR)}, {self.v2(LR+2)}")
        A(f"v_pk_add_f32 {self.v2(LR+4)}, {self.v2(LR+4)}, {self.v2(LR+6)}")
        A(f"v_pk_add_f32 {self.v2(LT)}, {self.v2(LR)}, {self.v2(LR+4)}")
        for qh in range(2):
            A(f"v_rcp_f32 v{fa[qh]}, v{LT+qh}")
        for qh in range(2):
            A(f"v_log_f32 v{FM+2*qh}, v{LT+qh}")
        for p in range(4):
            a = self.AC+2*p
            A(f"v_pk_mul_f32 {self.v2(a)}, {self.v2(a)}, {self.v2(fa[p//2])} op_sel_hi:[1,0]")
        for qh in range(2):
            A(f"v_add_f32 v{FM+2*qh}, v{FM+2*qh}, v{self.mC[qh]}")
        for p in range(4):
            a = self.AC+2*p
            A(f"v_cvt_pk_bf16_f32 v{DM+p}, v{a}, v{a+1}")
        for r in range(0, 8, 2):
            A(f"v_mov_b64 {self.v2(self.AC+r)}, 0")
        A(f"s_cmp_eq_u32 {self.sPw}, 1")
        A("s_cbranch_scc1 L_sw1")
        if not self.nopart: A(f"buffer_store_dwordx4 {self.v4(DM)}, v{self.vL16}, {self.sW}, {self.sSend} offen sc1")
        A("s_branch L_v")
        L("L_sw1")
        if not self.nopart: A(f"buffer_store_dwordx4 {self.v4(DM)}, v{self.vL16}, {self.sW}, {self.sSend} offen")
        A("s_branch L_v")
        L("L_flag")
        if self.forcelate:
            A("s_branch L_v")
            L("L_flag2")
        A("s_waitcnt vmcnt(0)")
        A("s_mov_b64 exec, 0xffff")
        A(f"s_cmp_eq_u32 {self.sPw}, 1")
        A("s_cbranch_scc1 L_flag1")
        if not self.nopart: A(f"buffer_store_dwordx4 {self.v4(FM)}, v{self.vL16}, {self.sW}, {self.sSend} offen offset:1024 sc1")
        A("s_branch L_flag3")
        L("L_flag1")
        if not self.nopart: A(f"buffer_store_dwordx4 {self.v4(FM)}, v{self.vL16}, {self.sW}, {self.sSend} offen offset:1024")
        L("L_flag3")
        A("s_mov_b64 exec, -1")
        if self.forcelate: A("s_branch L_done2")
        A("s_branch L_v")
        C("hand-off state machine: 0 ask header, 1 check header and ask data, 2 scale data, 3 ready")
        L("L_sm")
        if self.stamps:
            A(f"s_cmp_lg_u32 {self.sRem}, 1"); A("s_cbranch_scc1 L_sm0"); self.stamp(3); L("L_sm0")
        A(f"s_cmp_eq_u32 {self.sF}, 0")
        A("s_cbranch_scc1 L_ask")
        A(f"s_cmp_eq_u32 {self.sF}, 3")
        A("s_cbranch_scc1 L_smx")
        A("s_waitcnt vmcnt(0)")
        A(f"s_cmp_eq_u32 {self.sF}, 2")
        A("s_cbranch_scc1 L_scale")
        A(f"v_xor_b32 v{tw}, v{GM+1}, v{self.vTag}"); A(f"v_xor_b32 v{tw+1}, v{GM+3}, v{self.vTag}"); A(f"v_or_b32 v{tw}, v{tw}, v{tw+1}")
        A(f"v_cmp_ne_u32 vcc, 0, v{tw}")
        if not self.nohand:
            A("s_cbranch_vccz L_hdr")
            A("s_sub_u32 s76, s76, 1")
            A("s_cbranch_scc0 L_ask")
        L("L_hdr")
        ft, mT, lT = self.ft, self.mT, self.lT
        if not self.nopart and 'L' in self.dg: A(f"buffer_load_dwordx4 {self.v4(DM)}, v{self.vL16}, {self.sW}, {self.sRecv} offen {self.lfl}")
        for qh in range(2):
            A(f"v_max3_f32 v{tw+qh}, v{self.mC[qh]}, v{GM+2*qh}, v{mT+qh}")
        for qh in range(2):
            A(f"v_sub_f32 v{fa[qh]}, v{self.mC[qh]}, v{tw+qh}")
            A(f"v_sub_f32 v{fb[qh]}, v{GM+2*qh}, v{tw+qh}")
            A(f"v_sub_f32 v{ft[qh]}, v{mT+qh}, v{tw+qh}")
        for qh in range(2):
            A(f"v_exp_f32 v{fa[qh]}, v{fa[qh]}"); A(f"v_exp_f32 v{fb[qh]}, v{fb[qh]}"); A(f"v_exp_f32 v{ft[qh]}, v{ft[qh]}")
        A(f"s_mov_b32 {self.sF}, 2")
        for qh in range(2):
            A(f"v_fma_f32 v{tw+qh}, v{LT+qh}, v{fa[qh]}, v{fb[qh]}")
        for qh in range(2):
            A(f"v_fmac_f32 v{tw+qh}, v{lT+qh}, v{ft[qh]}")
        for qh in range(2):
            A(f"v_rcp_f32 v{tw+qh}, v{tw+qh}")
        A("s_nop 0")
        for qh in range(2):
            A(f"v_mul_f32 v{fa[qh]}, v{fa[qh]}, v{tw+qh}"); A(f"v_mul_f32 v{fb[qh]}, v{fb[qh]}, v{tw+qh}"); A(f"v_mul_f32 v{ft[qh]}, v{ft[qh]}, v{tw+qh}")
        for p in range(4):
            A(f"v_pk_mul_f32 {self.v2(TS+2*p)}, {self.v2(TS+2*p)}, {self.v2(ft[p//2])} op_sel_hi:[1,0]")
        A("s_branch L_smx")
        L("L_ask")
        if not self.nopart and 'H' in self.dg: A(f"buffer_load_dwordx4 {self.v4(GM)}, v{self.vFo}, {self.sW}, {self.sRecv} offen offset:1024 {self.lfl}")
        A(f"s_mov_b32 {self.sF}, 1")
        A("s_branch L_smx")
        L("L_scale")
        for p in range(4):
            A(f"v_lshlrev_b32 v{PBF+2*p}, 16, v{DM+p}"); A(f"v_and_b32 v{PBF+2*p+1}, 0xffff0000, v{DM+p}")
        for p in range(4):
            A(f"v_pk_fma_f32 {self.v2(PBF+2*p)}, {self.v2(PBF+2*p)}, {self.v2(fb[p//2])}, {self.v2(TS+2*p)} op_sel_hi:[1,0,1]")
        A(f"s_mov_b32 {self.sF}, 3")
        L("L_smx")
        A(f"s_cmp_lg_u32 {self.sRem}, 0")
        A("s_cbranch_scc1 L_v")
        if self.forcelate: A("s_branch L_done2")
        L("L_done")
        self.stamp(5)
        if self.forcelate:
            A("s_branch L_flag2")
            L("L_done2")
        A(f"s_cmp_lg_u32 {self.sF}, 3")
        A("s_cbranch_scc1 L_sm")
        A("s_nop 4")
        self.stamp(6)
        for p in range(4):
            a = self.AC+2*p
            A(f"v_pk_fma_f32 {self.v2(a)}, {self.v2(a)}, {self.v2(fa[p//2])}, {self.v2(PBF+2*p)} op_sel_hi:[1,0,1]")
        OUT = self.AO
        for p in range(4):
            a = self.AC+2*p
            A(f"v_cvt_pk_bf16_f32 v{OUT+p}, v{a}, v{a+1}")
        A(f"s_cmp_eq_u32 {self.sRole}, 0")
        A("s_cselect_b64 s[2:3], 1, 0")
        for h in range(2):
            A(f"v_permlane16_swap_b32 v{OUT+h}, v{OUT+2+h}")
        A(f"buffer_store_dwordx4 {self.v4(OUT)}, v{self.vOut}, {self.sO}, 0 offen {self.oflags}")
        A("s_cbranch_scc0 L_fin")
        A("s_mov_b64 exec, 1")
        A(f"buffer_store_dword v{self.vTag}, off, {self.sW}, 0 offset:3968")
        A("s_mov_b64 exec, -1")
    def tl(self):
        A = self.A
        A(f"buffer_load_dword v{self.vTag}, off, {self.sW}, 0 offset:3968")
        A(f"buffer_load_dword v{self.vDum}, off, {self.sO}, 0")
        if not self.notree:
            A(f"s_lshl_b32 s3, {self.sWave}, 10")
            A(f"s_add_u32 m0, s3, {TK}")
            A("s_nop 0")
            A(f"buffer_load_dwordx4 v1, {self.sKT}, s3 offen lds")
            A(f"s_add_u32 m0, s3, {TV}")
            A("s_nop 0")
            A(f"buffer_load_dwordx4 v1, {self.sVT}, s3 offen lds")
            A(f"buffer_load_dwordx2 {self.v2(self.vMask)}, v2, {self.sM}, 0 offen")
    def tree(self):
        A, L, C = self.A, self.L, self.C
        T0, TS, St, LR, FM = self.T0, self.TS, self.St, self.LR, self.FM
        nt = not self.notree
        L("L_e0")
        C("epoch and tree data landed: say hello {die id, tag} with a plain store")
        A("s_waitcnt vmcnt(0)")
        A(f"v_add_u32 v{self.vTag}, 1, v{self.vTag}")
        A(f"s_getreg_b32 {self.sPw}, hwreg(HW_REG_XCC_ID)")
        A(f"v_mov_b32 v{FM}, {self.sPw}"); A(f"v_mov_b32 v{FM+1}, v{self.vTag}")
        A("s_mov_b64 exec, 1")
        A(f"buffer_store_dwordx2 {self.v2(FM)}, off, {self.sW}, {self.sSend} offset:1280")
        A("s_mov_b64 exec, -1")
        A("s_branch L_k")
        L("L_e1")
        if nt:
            for s in range(4):
                A(f"v_add_u32 v{T0+s}, {TK}, v{self.vKR[s]}")
                A(f"ds_read_b128 {self.v4(self.AO+s*4)}, v{T0+s}")
            self.qk(TS)
        A("s_branch L_k")
        L("L_e2")
        if nt:
            big = -1.0e9 * math.sqrt(128.0)
            B0 = LR
            A(f"v_lshlrev_b32 v{B0}, 16, v{self.vMask}"); A(f"v_and_b32 v{B0+1}, 0xffff0000, v{self.vMask}")
            A(f"v_lshlrev_b32 v{B0+2}, 16, v{self.vMask+1}"); A(f"v_and_b32 v{B0+3}, 0xffff0000, v{self.vMask+1}")
            for r in range(4): A(f"v_sub_f32 v{B0+r}, 1.0, v{B0+r}")
            for r in range(4): A(f"v_mul_f32 v{B0+r}, 0x{f2u(big):08x}, v{B0+r}")
            for qh in range(2):
                for r in range(4):
                    A(f"v_add_f32 v{TS+qh*4+r}, v{TS+qh*4+r}, v{B0+r}")
                A(f"v_max3_f32 v{self.mT+qh}, v{TS+qh*4}, v{TS+qh*4+1}, v{TS+qh*4+2}")
                A(f"v_max_f32 v{self.mT+qh}, v{self.mT+qh}, v{TS+qh*4+3}")
            self.xlane(self.mT, self.mT+1, "v_max_f32")
        A("s_branch L_k")
        L("L_e3")
        if nt:
            for qh in range(2):
                A(f"v_mul_f32 v{self.mT+qh}, {self.sC}, v{self.mT+qh}")
            for qh in range(2):
                for r in range(4):
                    A(f"v_fma_f32 v{TS+qh*4+r}, v{TS+qh*4+r}, {self.sC}, -v{self.mT+qh}")
            for r in range(4):
                for qh in range(2):
                    A(f"v_exp_f32 v{TS+qh*4+r}, v{TS+qh*4+r}")
            A("s_nop 0")
            for qh in range(2):
                A(f"v_add_f32 v{self.lT+qh}, v{TS+qh*4}, v{TS+qh*4+1}")
                A(f"v_add_f32 v{T0+qh}, v{TS+qh*4+2}, v{TS+qh*4+3}")
            A(f"v_pk_add_f32 {self.v2(self.lT)}, {self.v2(self.lT)}, {self.v2(T0)}")
            for qh in range(2):
                for h in range(2):
                    A(f"v_cvt_pk_bf16_f32 v{LR+2+qh*2+h}, v{TS+qh*4+2*h}, v{TS+qh*4+2*h+1}")
        A("s_branch L_k")
        L("L_e4")
        A(f"buffer_load_dwordx2 {self.v2(FM+2)}, off, {self.sW}, {self.sRecv} offset:1280 sc1")
        if nt:
            A(f"ds_read_b64_tr_b16 {self.v2(LR)}, v{self.vTR}")
            self.xlane(self.lT, self.lT+1, "v_add_f32")
            A("s_waitcnt lgkmcnt(0)")
            for qh in range(2):
                A(f"v_mfma_f32_16x16x16_bf16 {self.v4(TS+4*qh)}, {self.v2(LR)}, {self.v2(LR+2+2*qh)}, 0")
        A("s_branch L_k")
        L("L_e5")
        C("partner's hello equal to mine: same die, the hand-off may stay in this die's L2")
        A("s_waitcnt vmcnt(0)")
        A(f"v_cmp_eq_u64 vcc, {self.v2(FM)}, {self.v2(FM+2)}")
        A("s_cmp_eq_u64 vcc, -1")
        A(f"s_cselect_b32 {self.sPw}, {0 if self.forcefar else 1}, 0")
        A("s_branch L_k")

    def gen(self):
        A, L, C = self.A, self.L, self.C
        self.o.append(HEADER + f"; @launch grid=(256,1,1) block=(320,1,1) lds={LDS}")
        self.o.append('.amdgcn_target "amdgcn-amd-amdhsa--gfx950"')
        self.o.append(".text"); self.o.append(f".globl {KNAME}"); self.o.append(".p2align 8")
        self.o.append(f".type {KNAME},@function"); L(KNAME)
        self.stamp(0)
        if self.padto: A("s_memrealtime s[96:97]")
        A("s_load_dwordx16 s[4:19], s[0:1], 0")
        A("s_load_dwordx2 s[20:21], s[0:1], 64")
        A("s_cmp_ge_u32 s2, 256")
        A("s_cbranch_scc1 L_end")
        A("v_lshrrev_b32 v8, 6, v0")
        A("v_and_b32 v0, 63, v0")
        if self.mapmode == 0:
            A(f"s_and_b32 {self.sRole}, s2, 1"); A(f"s_lshr_b32 {self.sPair}, s2, 1")
        else:
            b = self.mapmode
            A(f"s_bfe_u32 {self.sRole}, s2, {0x10000+b}")
            A(f"s_lshr_b32 {self.sPair}, s2, {b+1}"); A(f"s_lshl_b32 {self.sPair}, {self.sPair}, {b}")
            A(f"s_and_b32 s3, s2, {(1<<b)-1}"); A(f"s_or_b32 {self.sPair}, {self.sPair}, s3")
        A(f"v_readfirstlane_b32 {self.sWave}, v8")
        A(f"s_lshl1_add_u32 s22, {self.sPair}, {self.sRole}")
        A("s_lshl_b32 s22, s22, 18")
        A("v_lshrrev_b32 v9, 4, v0")
        A("v_lshlrev_b32 v10, 1, v9"); A("v_xor_b32 v10, v10, v0"); A("v_and_b32 v10, 15, v10")
        A(f"s_sub_u32 {self.sWave}, {self.sWave}, 1")
        A("s_cbranch_scc0 L_comp")
        self.loader()
        L("L_comp")
        A(f"s_lshl_b32 {self.sW4}, {self.sWave}, 12")
        C("tree DMA source offset: rows 4w+g")
        A("v_lshlrev_b32 v1, 8, v9"); A("v_lshl_add_u32 v1, v10, 4, v1")
        A(f"s_and_b32 s2, {self.sWave}, 1"); A("s_lshl_b32 s2, s2, 7"); A("v_xor_b32 v1, s2, v1")
        C("mask offset: (q%8)*16 + g*8 (+128 for g>=2: out of range)")
        A("v_and_b32 v2, 7, v0"); A("v_lshlrev_b32 v2, 4, v2"); A("v_lshl_add_u32 v2, v9, 3, v2")
        A("v_lshrrev_b32 v11, 5, v0"); A("v_lshl_add_u32 v2, v11, 7, v2")
        C("K/Q read lane bases: rho*256 + ((4s+g)^(2*(rho%8)))*16")
        A("v_and_b32 v10, 15, v0"); A("v_and_b32 v11, 7, v0"); A("v_lshlrev_b32 v11, 1, v11"); A("v_xor_b32 v11, v11, v9")
        A("v_lshlrev_b32 v3, 8, v10"); A("v_lshl_add_u32 v3, v11, 4, v3")
        for s in range(1, 4): A(f"v_xor_b32 v{3+s}, {64*s}, v3")
        A(f"v_lshlrev_b32 v{self.vFo}, 4, v10")
        C("out offset: (16*(row&1)+q)*256 + role*128 + wave*32 + (row>>1)*16")
        A(f"v_and_b32 v{self.vOut}, 31, v0"); A(f"v_lshlrev_b32 v{self.vOut}, 8, v{self.vOut}")
        A("v_lshrrev_b32 v11, 5, v0"); A(f"v_lshl_add_u32 v{self.vOut}, v11, 4, v{self.vOut}")
        A(f"s_lshl2_add_u32 s2, {self.sRole}, {self.sWave}"); A("s_lshl_b32 s3, s2, 5"); A(f"v_add_u32 v{self.vOut}, s3, v{self.vOut}")
        C("transposed-read lane bases: row=l/4, c=l%4")
        A("v_lshrrev_b32 v10, 2, v0"); A("v_bfe_u32 v12, v0, 1, 1"); A("v_and_b32 v13, 1, v0"); A("v_lshlrev_b32 v13, 3, v13")
        C(" tree V (256-B rows): row*256 + ((8*role+2w+c/2)^(2*(row%8)))*16 + (c%2)*8")
        A("s_lshl_b32 s2, s2, 1"); A("v_add_u32 v14, s2, v12"); A("v_and_b32 v11, 7, v10"); A("v_lshlrev_b32 v11, 1, v11"); A("v_xor_b32 v11, v11, v14")
        A("v_lshl_add_u32 v8, v10, 8, v13"); A("v_lshl_add_u32 v8, v11, 4, v8"); A(f"v_add_u32 v8, {TV}, v8")
        C(" V ring (128-B rows): row*128 + ((2w+c/2)^(row&6))*16 + (c%2)*8")
        A("v_and_b32 v14, 7, v14"); A("v_and_b32 v11, 6, v10"); A("v_xor_b32 v11, v11, v14")
        A("v_lshl_add_u32 v7, v10, 7, v13"); A("v_lshl_add_u32 v7, v11, 4, v7")
        A(f"v_lshlrev_b32 v{self.vL16}, 4, v0")
        A("v_lshlrev_b32 v11, 3, v0")
        A(f"v_add_u32 v{self.vPR}, {PR}, v11")
        A(f"s_lshr_b32 s2, {self.sW4}, 2"); A(f"v_add_u32 v{self.vPW}, s2, v{self.vPR}")
        A(f"v_add_u32 v{self.vLX}, {MX}, v11")
        A("s_waitcnt lgkmcnt(0)")
        A(f"s_lshl_b32 {self.sT}, {self.sPair}, 11")
        self.srd(36, 10, 11, self.sT, 2048)
        self.srd(40, 12, 13, self.sT, 2048)
        A(f"s_lshr_b32 {self.sT}, {self.sPair}, 3"); A(f"s_lshl_b32 {self.sT}, {self.sT}, 7")
        self.srd(44, 14, 15, self.sT, 128)
        A(f"s_lshl_b32 s3, {self.sPair}, 13")
        self.srd(48, 16, 17, "s3", 8192)
        A(f"s_lshl2_add_u32 {self.sT}, {self.sPair}, {self.sWave}"); A(f"s_lshl_b32 {self.sT}, {self.sT}, 12")
        self.srd(52, 20, 21, self.sT, 4096)
        A(f"s_lshl_b32 {self.sSend}, {self.sRole}, 11"); A(f"s_xor_b32 {self.sRecv}, {self.sSend}, 0x800")
        c = (128 ** -0.5) * math.log2(math.e)
        A(f"s_mov_b32 {self.sC}, 0x{f2u(c):08x}")
        A(f"s_mov_b32 {self.sRem}, {N}")
        A(f"s_mov_b32 {self.sRd}, {self.sW4}")
        A(f"s_mov_b32 {self.sIdx}, 0"); A(f"s_mov_b32 {self.sP}, 0")
        for qh in range(2):
            A(f"v_mov_b32 v{self.mR[qh]}, 0x{f2u(-3.0e38):08x}")
            A(f"v_mov_b32 v{self.lS[qh]}, 0")
        for s in range(4):
            A(f"v_add_u32 v{self.T0+s}, {QS}, v{self.vKR[s]}")
        A(f"s_mov_b32 s78, {self.sWave}")
        A("s_mov_b32 s76, 0x200000")
        if self.early: self.tl()
        self.compute()
        L("L_fin")
        if self.padto:
            L("L_pad")
            A("s_memrealtime s[98:99]"); A("s_waitcnt lgkmcnt(0)"); A("s_sub_u32 s98, s98, s96")
            A(f"s_cmp_lt_u32 s98, {self.padto}"); A("s_cbranch_scc1 L_pad")
        if self.stamps:
            A("s_waitcnt vmcnt(0)")
            self.stamp(7)
            A("s_getreg_b32 s3, hwreg(HW_REG_XCC_ID)")
            A("s_waitcnt lgkmcnt(0)")
            A("v_mov_b32 v10, 0")
            for k in range(self.nstamp):
                A(f"v_writelane_b32 v10, s{80+2*k}, {k}")
            A("v_writelane_b32 v10, s76, 12"); A(f"v_writelane_b32 v10, {self.sPw}, 11")
            A("v_writelane_b32 v10, s3, 14")
            A(f"v_writelane_b32 v10, {self.sRole}, 15")
            A(f"v_writelane_b32 v10, {self.sPair}, 13")
            A(f"s_lshl_b32 s2, {self.sPair}, 1"); A(f"s_add_u32 s2, s2, {self.sRole}"); A("s_lshl_b32 s2, s2, 2"); A(f"s_add_u32 s2, s2, {self.sWave}")
            A("s_lshl_b32 s2, s2, 6"); A("s_add_u32 s2, s2, 0x800000")
            self.srd(52, 20, 21, None, 0x1000000)
            A("v_lshlrev_b32 v11, 2, v0")
            A("v_cmp_gt_u32 vcc, 16, v0")
            A("s_and_saveexec_b64 s[22:23], vcc")
            A(f"buffer_store_dword v10, v11, {self.sW}, s2 offen")
        L("L_end")
        A("s_endpgm")
        self.tree()
        self.o.append('.section .rodata,"a"'); self.o.append(".p2align 6"); self.o.append(f".amdhsa_kernel {KNAME}")
        for d in ("next_free_vgpr 256", "next_free_sgpr 102", "accum_offset 256", "group_segment_fixed_size 0", "kernarg_size 72",
                  "user_sgpr_count 2", "user_sgpr_kernarg_segment_ptr 1", "system_sgpr_workgroup_id_x 1"):
            self.o.append("  .amdhsa_"+d)
        self.o.append(".end_amdhsa_kernel")
        return self.finish()

    def finish(self):
        def build(nseg):
            out = []
            for l in self.o:
                if l == "@WARMCALL":
                    if self.warm:
                        out.append("  ; instruction-cache warm-up: hop (EXEC=0) through code this workgroup runs later")
                        out.append(f"  s_cmp_ge_u32 s78, {nseg}")
                        out.append("  s_cbranch_scc1 L_hskip")
                        out.append("  s_mov_b64 exec, 0")
                        for k in range(nseg):
                            out.append(f"  s_cmp_eq_u32 s78, {k}")
                            out.append(f"  s_cbranch_scc1 L_h{k*self.seg}")
                        out.append("L_hret:")
                        out.append("  s_mov_b64 exec, -1")
                        out.append("  s_add_u32 s78, s78, 4")
                        out.append("L_hskip:")
                        out.append("@HOPON")
                else: out.append(l)
            return out
        if not self.warm:
            return "\n".join(l for l in build(0) if not l.startswith("@"))+"\n"
        nseg = 1
        while True:
            base = build(nseg)
            tmp = []
            for l in base:
                if l.startswith("@"): continue
                tmp.append(l)
                if l == "L_hret:": tmp += [f"L_h{k*self.seg}:" for k in range(nseg)]
            sz = sizes_of(tmp)
            res = []; addr = 0; k = 0; nh = 0; on = False; lastline = -1; intext = True
            for l in base:
                if l == "@HOPON": on = True; lastline = addr//self.warm; continue
                if l == "@HOPOFF": on = False; continue
                if l.startswith(".section"): intext = False
                if intext and isinstr(l):
                    if on and addr//self.warm != lastline:
                        lastline = addr//self.warm
                        res.append(("hop", nh)); nh += 1; addr += 4
                    addr += sz[k]; k += 1
                res.append(l)
            need = -(-nh//self.seg)
            if need <= nseg: break
            nseg = need
        start = res.index("L_hret:")
        order = [x[1] for x in res[start:] if isinstance(x, tuple)] + [x[1] for x in res[:start] if isinstance(x, tuple)]
        out = []
        for x in res:
            if isinstance(x, tuple):
                p = order.index(x[1])
                out.append(f"L_h{p}:")
                last = (p+1) % self.seg == 0 or p+1 == nh
                out.append(f"  s_cbranch_execz {'L_hret' if last else 'L_h%d' % (p+1)}")
            else:
                out.append(x)
                if x == "L_hret:":
                    out += [f"L_h{k*self.seg}:" for k in range(nseg) if k*self.seg >= nh]
        return "\n".join(out)+"\n"

def sizes_of(lines):
    import subprocess, re, tempfile
    d = tempfile.mkdtemp()
    open(d+"/a.s", "w").write("\n".join(lines)+"\n")
    subprocess.run(["clang", "-x", "assembler", "-target", "amdgcn-amd-amdhsa", "-mcpu=gfx950", "-c", d+"/a.s", "-o", d+"/a.o"], check=True)
    dis = subprocess.run(["llvm-objdump", "-d", "--mcpu=gfx950", d+"/a.o"], capture_output=True, text=True).stdout
    sz = []
    for l in dis.splitlines():
        m = re.search(r"// ([0-9A-F]{12}): ((?:[0-9A-F]{8} ?)+)", l)
        if m: sz.append(4*len(m.group(2).split()))
    return sz
def isinstr(l):
    return l.startswith("  ") and not l.startswith("  ;") and not l.startswith("  .")

if __name__ == "__main__":
    out = sys.argv[1]
    kw = eval("dict(" + (sys.argv[2] if len(sys.argv) > 2 else "") + ")")
    open(out, "w").write(Gen(**kw).gen())
```

```python
import sys, math, struct
KNAME = "standalone__tree_speculative_verify_tree_attention_over_candidate_token_tree__sampling_kernel"
HEADER = """; Kernarg layout for this problem (72 bytes, ptrs only, base s[0:1]):
"""
def f2u(x): return struct.unpack("<I", struct.pack("<f", x))[0]
RINGB = 81920
PR, QS, TK, TV, MX, LX, LDS = 81920, 81920, 147456, 151552, 155648, 157696, 159744
N = 16

class Gen:
    def __init__(self, flags="nt", stamps=False, padto=0, mapmode=3, D=20, DV=None, nb=0, D2=32, treeat=5,
                 nohand=False, notree=False, noq=False, nopart=False, prio=3, oflags="", warm=128, seg=2,
                 frac=(0,)*8, prof=False, f0=3, forcelate=False, sfl='sc1', lfl='sc1', dg='DFHL', catch=6, forcefar=False, nearfl='nt', fs=1, fbk=None, fbfl='nt'):
        self.fbk = fbk; self.fbfl = fbfl
        self.nearfl = nearfl; self.fs = fs
        self.forcefar = forcefar; pc0 = pcn = 2; early = True
        self.sfl, self.lfl, self.dg, self.pc0, self.pcn, self.catch, self.early = sfl, lfl, dg, pc0, pcn, catch, early
        self.o = []
        self.flags, self.stamps, self.padto, self.mapmode = flags, stamps, padto, mapmode
        self.D, self.DV, self.nb, self.D2, self.treeat = D, DV or D, nb, D2, treeat
        self.nohand, self.notree, self.noq, self.nopart, self.prio = nohand, notree, noq, nopart, prio
        self.oflags, self.warm, self.seg, self.frac, self.prof, self.f0, self.forcelate = oflags, warm, seg, frac, prof, f0, forcelate
        assert 14 <= D <= 31 and 14 <= self.DV <= 31 and 17 <= D2 <= 32
        self.uid = 0
    def A(self, s): self.o.append("  "+s)
    def L(self, s): self.o.append(s+":")
    def C(self, s): self.o.append("  ; "+s)
    vKR = (3, 4, 5, 6); vVR = 7; vTR = 8; vPR = 9; vPW = 10; vTag = 11
    mR = (12, 13); mC = (14, 15); lS = (16, 17); T0 = 18
    St = 24; SS = 32; AO = 160; PO = 176; QR = 176; AC = 208; LR = 216; PK = 224
    vL16 = 228; vDum = 229; vMask = 230; vLX = 232; vOut = 233; vFo = 234
    TS = 236
    fa = (244, 246); FM = 248
    mT = 252; lT = 254; ft = (56, 58)
    DM = 32; PBF = 36; fb = (44, 46); tw = 48; GM = 52
    @staticmethod
    def v4(r): return f"v[{r}:{r+3}]"
    @staticmethod
    def v2(r): return f"v[{r}:{r+1}]"
    def Q(self, qh, s): return self.v4(self.QR + (qh*4+s)*4)
    sX, sQ, sKT, sVT, sM, sO, sW = "s[24:27]", "s[32:35]", "s[36:39]", "s[40:43]", "s[44:47]", "s[48:51]", "s[52:55]"
    sVb = (28, 29)
    sPair, sRole, sWave, sSk, sRem, sA, sM0, sRd, sIdx, sP, sW4, sT = ["s%d" % i for i in range(60, 72)]
    sC, s4k, sF, sPw, sCnt, sSend, sRecv = "s72", "s73", "s74", "s75", "s79", "s30", "s31"
    nstamp = 0
    def stamp(self, idx):
        if self.stamps:
            r = 80 + 2*idx
            self.nstamp = max(self.nstamp, idx+1)
            self.A(f"s_memrealtime s[{r}:{r+1}]")
    def ringadv(self, r):
        self.A(f"s_add_u32 {r}, {r}, 0x4000")
        self.A(f"s_cmp_ge_u32 {r}, {RINGB}")
        self.A(f"s_cselect_b32 s77, {RINGB}, 0")
        self.A(f"s_sub_u32 {r}, {r}, s77")
    def xlane(self, a, b, op):
        A = self.A
        A("s_nop 1")
        A(f"v_permlane32_swap_b32 v{a}, v{b}")
        A(f"{op} v{a}, v{a}, v{b}")
        A(f"v_mov_b32 v{b}, v{a}")
        A("s_nop 1")
        A(f"v_permlane16_swap_b32 v{a}, v{b}")
        A(f"{op} v{a}, v{a}, v{b}")
        A(f"v_mov_b32 v{b}, v{a}")
        A("s_nop 1")
        A(f"v_permlane32_swap_b32 v{a}, v{b}")
    def srd(self, d, lo, hi, add, nbytes):
        A = self.A
        if add is None:
            A(f"s_mov_b32 s{d}, s{lo}"); A(f"s_mov_b32 s{d+1}, s{hi}")
        else:
            A(f"s_add_u32 s{d}, s{lo}, {add}"); A(f"s_addc_u32 s{d+1}, s{hi}, 0")
        A(f"s_mov_b32 s{d+2}, {nbytes}")
        A(f"s_mov_b32 s{d+3}, 0x20000")
    def rload(self, ins):
        if self.nopart: return
        if self.nearfl == 'sc1':
            self.A(ins+" sc1"); return
        self.uid += 1
        u = self.uid
        self.A(f"s_cmp_eq_u32 {self.sPw}, 1")
        self.A(f"s_cbranch_scc1 L_r{u}")
        self.A(ins+" sc1")
        self.A(f"s_branch L_rr{u}")
        self.L(f"L_r{u}")
        self.A(ins+" "+self.nearfl)
        self.L(f"L_rr{u}")
    def qk(self, dst=None):
        A = self.A
        dst = self.St if dst is None else dst
        for s in range(4):
            A(f"s_waitcnt lgkmcnt({3-s})")
            for qh in range(2):
                d = self.v4(dst+qh*4)
                A(f"v_mfma_f32_16x16x32_bf16 {d}, {self.v4(self.AO+s*4)}, {self.Q(qh,s)}, {'0' if s == 0 else d}")
    def pcalc(self):
        A = self.A
        A(f"s_set_gpr_idx_on {self.sIdx}, gpr_idx(SRC0)")
        for qh in range(2):
            for r in range(4):
                A(f"v_fma_f32 v{self.St+qh*4+r}, v{self.SS+qh*4+r}, {self.sC}, -v{self.mC[qh]}")
        A("s_set_gpr_idx_off")
        for r in range(4):
            for qh in range(2):
                A(f"v_exp_f32 v{self.St+qh*4+r}, v{self.St+qh*4+r}")
        A(f"s_add_u32 {self.sIdx}, {self.sIdx}, 8")
        for r in range(4):
            for qh in range(2):
                A(f"v_add_f32 v{self.lS[qh]}, v{self.lS[qh]}, v{self.St+qh*4+r}")
        for qh in range(2):
            for h in range(2):
                A(f"v_cvt_pk_bf16_f32 v{self.PK+qh*2+h}, v{self.St+qh*4+2*h}, v{self.St+qh*4+2*h+1}")
        A(f"ds_write2st64_b64 v{self.vPW}, {self.v2(self.PK)}, {self.v2(self.PK+2)} offset0:0 offset1:1")
        A(f"v_add_u32 v{self.vPW}, 0x1000, v{self.vPW}")

    def ldk(self, i):
        self.A(f"buffer_load_dwordx4 v{1+i%2}, {self.sX}, {self.sA} offen offset:{i*256} {self.flags} lds")
    def ldv(self, j):
        self.A(f"buffer_load_dwordx4 v{5+j//8}, {self.sX}, {self.sA} offen offset:{(j%8)*512} {self.flags} lds")
    def m0k(self, i): self.A(f"s_mov_b32 m0, {self.sM0}" if i == 0 else "s_addk_i32 m0, 0x300")
    def m0v(self, j): self.A(f"s_mov_b32 m0, {self.sM0}" if j == 0 else ("s_addk_i32 m0, 0x1200" if j == 8 else "s_addk_i32 m0, 0x200"))
    def pstamp(self):
        if self.prof:
            A = self.A
            A("s_waitcnt lgkmcnt(0)"); A("s_mov_b32 m0, s79"); A("v_writelane_b32 v12, s44, m0"); A("s_add_u32 s79, s79, 1"); A("s_memrealtime s[44:45]")
    def gated(self, D, m0, ld, first=None):
        A, L = self.A, self.L
        fr = any(self.frac) or self.fbk
        if self.fbk:
            self.uid += 1
            A(f"s_bitcmp1_b32 {self.sRem}, 0")
            A(f"s_cbranch_scc0 L_f{self.uid}")
            A("v_cmp_ge_u32 vcc, v14, v15")
            A("v_add_u32 v15, 1, v15")
            A("s_bcnt1_i32_b64 s2, vcc")
            A(f"buffer_load_ubyte v14, v0, s[56:59], 0 offen {self.fbfl}")
            A("buffer_store_byte v15, v16, s[56:59], s76 offen")
            A("s_cmp_ge_u32 s2, s78")
            A("s_cselect_b64 vcc, -1, 0")
            L(f"L_f{self.uid}")
        elif fr:
            A(f"s_bitcmp1_b32 s78, {self.sRem}"); A("s_cselect_b64 vcc, -1, 0")
        Dh = D + (self.fs if fr else 0)
        assert Dh <= 32
        for i in range(16):
            m0(i)
            if fr:
                self.uid += 1
                A(f"s_waitcnt vmcnt({Dh-1})")
                A(f"s_cbranch_vccnz L_g{self.uid}")
            A(f"s_waitcnt vmcnt({D-1})")
            if fr: L(f"L_g{self.uid}")
            ld(i)
            if i == Dh-17:
                if first:
                    A(f"s_cmp_eq_u32 {self.sRem}, {2*N-1}")
                    A(f"s_cbranch_scc1 {first}")
                A("s_barrier")
                if first: L(first)
        self.pstamp()
    def loader(self):
        A, L, C = self.A, self.L, self.C
        L("L_loader")
        C("K source lane offsets: g*4096 + (slot ^ 2g ^ 8*(i%2))*16 ; row i through the immediate offset")
        A("v_lshlrev_b32 v1, 12, v9"); A("v_lshl_add_u32 v1, v10, 4, v1")
        A("v_xor_b32 v2, 0x80, v1")
        if self.prio: A(f"s_setprio {self.prio}")
        A(f"s_mov_b32 {self.sA}, 0"); A("s_mov_b32 m0, 0")
        A("s_mov_b32 s26, 0x40000"); A("s_mov_b32 s27, 0x20000")
        A("s_waitcnt lgkmcnt(0)")
        A("s_add_u32 s24, s6, s22"); A("s_addc_u32 s25, s7, 0")
        fill = [f"s_lshl_b32 s3, {self.sPair}, 13", "s_add_u32 s32, s4, s3", "s_addc_u32 s33, s5, 0", "s_mov_b32 s34, 8192", "s_mov_b32 s35, 0x20000",
                "v_lshlrev_b32 v3, 8, v9", "v_lshl_add_u32 v3, v10, 4, v3", "v_xor_b32 v4, 0x80, v3", f"s_movk_i32 {self.s4k}, 0x1000",
                f"s_mov_b32 {self.sM0}, 0", f"s_mov_b32 {self.sRem}, {2*N-1}"]
        for i in range(16):
            self.ldk(i)
            if i < 15:
                A("s_addk_i32 m0, 0x300")
                if fill:
                    x = fill.pop(0); A(x)
                    if x.startswith("s_add_u32"): A(fill.pop(0))
                else: A("s_nop 0")
        if self.prof: A("s_memrealtime s[44:45]"); A("s_mov_b32 s79, 0"); A("s_mov_b32 s23, s2")
        if not self.noq:
            for h in range(2):
                A(f"s_mov_b32 m0, {QS+h*4096}"); A("s_nop 0")
                for x in range(4):
                    A(f"buffer_load_dwordx4 v{3+x%2}, {self.sQ}, {self.s4k if h else '0'} offen offset:{x*1024} lds")
        C("V source lane offsets: u=l/8: (u%4)*4096 + (u/4)*256 + ((l%8) ^ (u&6))*16")
        A("v_lshrrev_b32 v7, 3, v0"); A("v_and_b32 v8, 6, v7"); A("v_xor_b32 v8, v8, v0"); A("v_and_b32 v8, 7, v8"); A("v_lshlrev_b32 v8, 4, v8")
        A("v_and_b32 v5, 3, v7"); A("v_lshl_add_u32 v5, v5, 12, v8"); A("v_lshrrev_b32 v7, 2, v7"); A("v_lshl_add_u32 v5, v7, 8, v5")
        A("v_add_u32 v6, 0x4000, v5")
        if self.fbk:
            A("s_lshr_b32 s76, s2, 3"); A("s_and_b32 s3, s2, 7"); A("s_lshl_b32 s3, s3, 5")
            self.srd(56, 18, 19, "s3", 32)
            A("v_mov_b32 v14, 0"); A("v_mov_b32 v15, 1"); A("v_lshlrev_b32 v16, 5, v0")
            pk = sum((t & 31) << (5*x) for x, t in enumerate(self.fbk))
            A("s_getreg_b32 s2, hwreg(HW_REG_XCC_ID)"); A("s_and_b32 s2, s2, 7"); A("s_mul_i32 s2, s2, 5")
            A(f"s_mov_b32 s30, 0x{pk & 0xffffffff:08x}"); A(f"s_mov_b32 s31, 0x{pk >> 32:08x}")
            A("s_lshr_b64 s[30:31], s[30:31], s2"); A("s_and_b32 s78, s30, 31")
        elif any(self.frac):
            A("s_getreg_b32 s2, hwreg(HW_REG_XCC_ID)"); A("s_and_b32 s2, s2, 7"); A("s_mov_b32 s78, 0")
            for x in range(8):
                m = 0
                for b in range(32):
                    if int((b+1)*self.frac[x]+1e-9) != int(b*self.frac[x]+1e-9): m |= 1 << b
                if m:
                    A(f"s_cmp_eq_u32 s2, {x}"); A(f"s_cselect_b32 s78, 0x{m:08x}, s78")
        L("L_lk")
        A(f"s_add_u32 {self.sA}, {self.sA}, 0x4000")
        self.ringadv(self.sM0)
        self.gated(self.D, self.m0k, self.ldk, first="L_lkb")
        A(f"s_sub_u32 {self.sRem}, {self.sRem}, 1")
        A(f"s_cmp_lg_u32 {self.sRem}, {N}")
        A("s_cbranch_scc1 L_lk")
        self.o.append("@HOPON")
        A("s_add_u32 s24, s8, s22"); A("s_addc_u32 s25, s9, 0")
        A(f"s_lshl_b32 {self.sT}, {self.sRole}, 7")
        A(f"s_xor_b32 {self.sA}, {self.sT}, 0x80")
        L("L_lv")
        self.ringadv(self.sM0)
        self.gated(self.DV, self.m0v, self.ldv)
        A(f"s_add_u32 {self.sA}, {self.sA}, 0x8000")
        A(f"s_sub_u32 {self.sRem}, {self.sRem}, 1")
        A(f"s_cmp_eq_u32 {self.sRem}, {N//2}")
        A(f"s_cselect_b32 {self.sA}, {self.sT}, {self.sA}")
        A(f"s_cmp_lg_u32 {self.sRem}, {self.nb}")
        A("s_cbranch_scc1 L_lv")
        sig = -2; nb = self.nb
        for st in range(nb):
            self.ringadv(self.sM0)
            for i in range(16):
                j = st*16+i
                self.m0v(i)
                A(f"s_waitcnt vmcnt({self.D2-1})")
                self.ldv(i)
                if j - self.D2 == sig*16+15:
                    A("s_barrier"); sig += 1
            A(f"s_add_u32 {self.sA}, {self.sA}, 0x8000")
            self.pstamp()
        while sig < nb:
            A(f"s_waitcnt vmcnt({(nb-1-sig)*16})")
            self.pstamp()
            A("s_barrier"); sig += 1
        if self.prof:
            self.pstamp()
            A("v_writelane_b32 v12, s80, 60"); A(f"v_writelane_b32 v12, {self.sRole}, 61"); A("s_getreg_b32 s3, hwreg(HW_REG_XCC_ID)"); A("v_writelane_b32 v12, s3, 62")
            A("v_writelane_b32 v12, s23, 63")
            A("s_getreg_b32 s3, hwreg(HW_REG_HW_ID)"); A("v_writelane_b32 v12, s3, 59")
            self.srd(52, 20, 21, None, 0x1000000)
            A(f"s_lshl_b32 s2, {self.sPair}, 1"); A(f"s_add_u32 s2, s2, {self.sRole}"); A("s_lshl_b32 s2, s2, 8"); A("s_add_u32 s2, s2, 0x810000")
            A("v_lshlrev_b32 v13, 2, v0")
            A(f"buffer_store_dword v12, v13, {self.sW}, s2 offen")
        A("s_endpgm")
        self.o.append("@HOPOFF")

    def compute(self):
        A, L, C = self.A, self.L, self.C
        T0, LR, TS, St = self.T0, self.LR, self.TS, self.St
        LT = self.lS[0]
        fa, fb, tw, FM, GM, DM, PBF = self.fa, self.fb, self.tw, self.FM, self.GM, self.DM, self.PBF
        C("---- K phase")
        L("L_k")
        self.o.append("@WARMCALL")
        A("s_barrier")
        A(f"s_cmp_lg_u32 {self.sIdx}, 0")
        A("s_cbranch_scc1 L_k1")
        self.stamp(1)
        for qh in range(2):
            for s in range(4):
                A(f"ds_read_b128 {self.Q(qh,s)}, v{T0+s} offset:{qh*4096}")
        L("L_k1")
        for s in range(4):
            A(f"v_add_u32 v{T0+s}, {self.sRd}, v{self.vKR[s]}")
            A(f"ds_read_b128 {self.v4(self.AO+s*4)}, v{T0+s}")
        self.ringadv(self.sRd)
        self.qk()
        A("s_nop 7")
        for h in range(2):
            for qh in range(2):
                A(f"v_max3_f32 v{self.mR[qh]}, v{self.mR[qh]}, v{St+qh*4+2*h}, v{St+qh*4+2*h+1}")
        A(f"s_set_gpr_idx_on {self.sIdx}, gpr_idx(DST)")
        for k in range(8):
            A(f"v_mov_b32 v{self.SS+k}, v{St+k}")
        A("s_set_gpr_idx_off")
        A(f"s_add_u32 {self.sIdx}, {self.sIdx}, 8")
        A(f"s_sub_u32 {self.sRem}, {self.sRem}, 1")
        for rem, lab in ((11, "L_e0"), (9, "L_e1"), (8, "L_e2"), (7, "L_e3"), (6, "L_e4"), (3, "L_e5")):
            A(f"s_cmp_eq_u32 {self.sRem}, {rem}")
            A(f"s_cbranch_scc1 {lab}")
        A(f"s_cmp_lg_u32 {self.sRem}, 0")
        A("s_cbranch_scc1 L_k")
        C("---- phase change")
        self.stamp(2)
        self.xlane(self.mR[0], self.mR[1], "v_max_f32")
        A(f"s_lshr_b32 s2, {self.sW4}, 3")
        A(f"v_add_u32 v{T0}, s2, v{self.vLX}")
        A(f"ds_write_b64 v{T0}, {self.v2(self.mR[0])}")
        A(f"s_sub_u32 {self.sRd}, {self.sRd}, {self.sW4}")
        A(f"s_mov_b32 {self.sRem}, {N}")
        A(f"s_mov_b32 {self.sIdx}, 0")
        A(f"s_mov_b32 {self.sCnt}, {self.pc0}"); A(f"s_mov_b32 {self.sF}, 0")
        for r in range(0, 8, 2):
            A(f"v_mov_b64 {self.v2(self.AC+r)}, 0")
        A("s_waitcnt lgkmcnt(0)")
        A("s_barrier")
        for k in range(2):
            A(f"ds_read2st64_b64 {self.v4(LR+4*k)}, v{self.vLX} offset0:{2*k} offset1:{2*k+1}")
        A("s_waitcnt lgkmcnt(0)")
        for qh in range(2):
            A(f"v_max3_f32 v{self.mR[qh]}, v{LR+qh}, v{LR+2+qh}, v{LR+4+qh}")
            A(f"v_max_f32 v{self.mR[qh]}, v{self.mR[qh]}, v{LR+6+qh}")
            A(f"v_mul_f32 v{self.mC[qh]}, {self.sC}, v{self.mR[qh]}")
        L("L_pc")
        self.pcalc()
        A(f"s_sub_u32 {self.sCnt}, {self.sCnt}, 1")
        A(f"s_cmp_lg_u32 {self.sCnt}, 0")
        A("s_cbranch_scc1 L_pc")
        A(f"s_mov_b32 {self.sCnt}, {self.pcn}")
        A(f"s_cmp_lg_u32 {self.sIdx}, {8*N}")
        A("s_cbranch_scc1 L_vb")
        C("all P done: publish this wave's l")
        self.xlane(self.lS[0], self.lS[1], "v_add_f32")
        A(f"s_lshr_b32 s2, {self.sW4}, 3")
        A(f"v_add_u32 v{T0}, s2, v{self.vLX}")
        A(f"ds_write_b64 v{T0}, {self.v2(self.lS[0])} offset:2048")
        L("L_vb")
        A(f"s_mov_b32 {self.sSk}, 1")
        A("s_waitcnt lgkmcnt(0)")
        A("s_barrier")
        L("L_v")
        A(f"v_add_u32 v{T0+1}, {self.sP}, v{self.vPR}")
        A(f"v_add_u32 v{T0}, {self.sRd}, v{self.vVR}")
        for ks in range(4):
            for qh in range(2):
                A(f"ds_read2st64_b64 {self.v4(self.PO+(ks*2+qh)*4)}, v{T0+1} offset0:{ks*4+qh} offset1:{ks*4+2+qh}")
        self.ringadv(self.sRd)
        A(f"s_add_u32 {self.sP}, {self.sP}, 0x2000"); A(f"s_and_b32 {self.sP}, {self.sP}, 0xffff")
        A(f"s_sub_u32 {self.sRem}, {self.sRem}, 1")
        A(f"s_cmp_lg_u32 {self.sSk}, 0")
        A(f"s_mov_b32 {self.sSk}, 0")
        A("s_waitcnt lgkmcnt(7)")
        A("s_cbranch_scc1 L_v1")
        A("s_barrier")
        self.stamp(4)
        L("L_v1")
        for ks in range(4):
            for b in range(2):
                A(f"ds_read_b64_tr_b16 {self.v2(self.AO+ks*4+2*b)}, v{T0} offset:{(ks*2+b)*2048}")
        A(f"s_cmp_eq_u32 {self.sRem}, 0")
        for ks in range(4):
            A(f"s_waitcnt lgkmcnt({6-2*ks})")
            for qh in range(2):
                a = self.v4(self.AC+4*qh)
                A(f"v_mfma_f32_16x16x32_bf16 {a}, {self.v4(self.AO+ks*4)}, {self.v4(self.PO+(ks*2+qh)*4)}, {a}")
        A("s_cbranch_scc1 L_done")
        A(f"s_cmp_le_u32 {self.sRem}, {self.f0}")
        A("s_cbranch_scc1 L_sm")
        assert self.f0 < self.catch < 7
        A(f"s_cmp_ge_u32 {self.sRem}, 9")
        A("s_cbranch_scc1 L_pc")
        A(f"s_cmp_eq_u32 {self.sRem}, 8")
        A("s_cbranch_scc1 L_sw")
        A(f"s_cmp_eq_u32 {self.sRem}, 7")
        A("s_cbranch_scc1 L_flag")
        A(f"s_cmp_eq_u32 {self.sRem}, {self.catch}")
        A(f"s_cselect_b32 {self.sSk}, 1, 0")
        A("s_branch L_v")
        L("L_sw")
        C("end of the partner's column half: l total, header [w0, tag, w1, tag], send the data, restart the accumulators")
        for k in range(2):
            A(f"ds_read2st64_b64 {self.v4(LR+4*k)}, v{self.vLX} offset0:{4+2*k} offset1:{5+2*k}")
        A(f"v_mov_b32 v{FM+1}, v{self.vTag}"); A(f"v_mov_b32 v{FM+3}, v{self.vTag}")
        A("s_waitcnt lgkmcnt(0)")
        A(f"v_pk_add_f32 {self.v2(LR)}, {self.v2(LR)}, {self.v2(LR+2)}")
        A(f"v_pk_add_f32 {self.v2(LR+4)}, {self.v2(LR+4)}, {self.v2(LR+6)}")
        A(f"v_pk_add_f32 {self.v2(LT)}, {self.v2(LR)}, {self.v2(LR+4)}")
        for qh in range(2):
            A(f"v_rcp_f32 v{fa[qh]}, v{LT+qh}")
        for qh in range(2):
            A(f"v_log_f32 v{FM+2*qh}, v{LT+qh}")
        for p in range(4):
            a = self.AC+2*p
            A(f"v_pk_mul_f32 {self.v2(a)}, {self.v2(a)}, {self.v2(fa[p//2])} op_sel_hi:[1,0]")
        for qh in range(2):
            A(f"v_add_f32 v{FM+2*qh}, v{FM+2*qh}, v{self.mC[qh]}")
        for p in range(4):
            a = self.AC+2*p
            A(f"v_cvt_pk_bf16_f32 v{DM+p}, v{a}, v{a+1}")
        for r in range(0, 8, 2):
            A(f"v_mov_b64 {self.v2(self.AC+r)}, 0")
        A(f"s_cmp_eq_u32 {self.sPw}, 1")
        A("s_cbranch_scc1 L_sw1")
        if not self.nopart: A(f"buffer_store_dwordx4 {self.v4(DM)}, v{self.vL16}, {self.sW}, {self.sSend} offen sc1")
        A("s_branch L_v")
        L("L_sw1")
        if not self.nopart: A(f"buffer_store_dwordx4 {self.v4(DM)}, v{self.vL16}, {self.sW}, {self.sSend} offen")
        A("s_branch L_v")
        L("L_flag")
        if self.forcelate:
            A("s_branch L_v")
            L("L_flag2")
        A("s_waitcnt vmcnt(0)")
        A("s_mov_b64 exec, 0xffff")
        A(f"s_cmp_eq_u32 {self.sPw}, 1")
        A("s_cbranch_scc1 L_flag1")
        if not self.nopart: A(f"buffer_store_dwordx4 {self.v4(FM)}, v{self.vL16}, {self.sW}, {self.sSend} offen offset:1024 sc1")
        A("s_branch L_flag3")
        L("L_flag1")
        if not self.nopart: A(f"buffer_store_dwordx4 {self.v4(FM)}, v{self.vL16}, {self.sW}, {self.sSend} offen offset:1024")
        L("L_flag3")
        A("s_mov_b64 exec, -1")
        if self.forcelate: A("s_branch L_done2")
        A("s_branch L_v")
        C("hand-off state machine: 0 ask header, 1 check header and ask data, 2 scale data, 3 ready")
        L("L_sm")
        if self.stamps:
            A(f"s_cmp_lg_u32 {self.sRem}, 1"); A("s_cbranch_scc1 L_sm0"); self.stamp(3); L("L_sm0")
        A(f"s_cmp_eq_u32 {self.sF}, 0")
        A("s_cbranch_scc1 L_ask")
        A(f"s_cmp_eq_u32 {self.sF}, 3")
        A("s_cbranch_scc1 L_smx")
        A("s_waitcnt vmcnt(0)")
        A(f"s_cmp_eq_u32 {self.sF}, 2")
        A("s_cbranch_scc1 L_scale")
        A(f"v_xor_b32 v{tw}, v{GM+1}, v{self.vTag}"); A(f"v_xor_b32 v{tw+1}, v{GM+3}, v{self.vTag}"); A(f"v_or_b32 v{tw}, v{tw}, v{tw+1}")
        A(f"v_cmp_ne_u32 vcc, 0, v{tw}")
        if not self.nohand:
            A("s_cbranch_vccz L_hdr")
            A("s_sub_u32 s76, s76, 1")
            A("s_cbranch_scc0 L_ask")
        L("L_hdr")
        ft, mT, lT = self.ft, self.mT, self.lT
        self.rload(f"buffer_load_dwordx4 {self.v4(DM)}, v{self.vL16}, {self.sW}, {self.sRecv} offen")
        for qh in range(2):
            A(f"v_max3_f32 v{tw+qh}, v{self.mC[qh]}, v{GM+2*qh}, v{mT+qh}")
        for qh in range(2):
            A(f"v_sub_f32 v{fa[qh]}, v{self.mC[qh]}, v{tw+qh}")
            A(f"v_sub_f32 v{fb[qh]}, v{GM+2*qh}, v{tw+qh}")
            A(f"v_sub_f32 v{ft[qh]}, v{mT+qh}, v{tw+qh}")
        for qh in range(2):
            A(f"v_exp_f32 v{fa[qh]}, v{fa[qh]}"); A(f"v_exp_f32 v{fb[qh]}, v{fb[qh]}"); A(f"v_exp_f32 v{ft[qh]}, v{ft[qh]}")
        A(f"s_mov_b32 {self.sF}, 2")
        for qh in range(2):
            A(f"v_fma_f32 v{tw+qh}, v{LT+qh}, v{fa[qh]}, v{fb[qh]}")
        for qh in range(2):
            A(f"v_fmac_f32 v{tw+qh}, v{lT+qh}, v{ft[qh]}")
        for qh in range(2):
            A(f"v_rcp_f32 v{tw+qh}, v{tw+qh}")
        A("s_nop 0")
        for qh in range(2):
            A(f"v_mul_f32 v{fa[qh]}, v{fa[qh]}, v{tw+qh}"); A(f"v_mul_f32 v{fb[qh]}, v{fb[qh]}, v{tw+qh}"); A(f"v_mul_f32 v{ft[qh]}, v{ft[qh]}, v{tw+qh}")
        for p in range(4):
            A(f"v_pk_mul_f32 {self.v2(TS+2*p)}, {self.v2(TS+2*p)}, {self.v2(ft[p//2])} op_sel_hi:[1,0]")
        A("s_branch L_smx")
        L("L_ask")
        self.rload(f"buffer_load_dwordx4 {self.v4(GM)}, v{self.vFo}, {self.sW}, {self.sRecv} offen offset:1024")
        A(f"s_mov_b32 {self.sF}, 1")
        A("s_branch L_smx")
        L("L_scale")
        for p in range(4):
            A(f"v_lshlrev_b32 v{PBF+2*p}, 16, v{DM+p}"); A(f"v_and_b32 v{PBF+2*p+1}, 0xffff0000, v{DM+p}")
        for p in range(4):
            A(f"v_pk_fma_f32 {self.v2(PBF+2*p)}, {self.v2(PBF+2*p)}, {self.v2(fb[p//2])}, {self.v2(TS+2*p)} op_sel_hi:[1,0,1]")
        A(f"s_mov_b32 {self.sF}, 3")
        L("L_smx")
        A(f"s_cmp_lg_u32 {self.sRem}, 0")
        A("s_cbranch_scc1 L_v")
        if self.forcelate: A("s_branch L_done2")
        L("L_done")
        self.stamp(5)
        if self.forcelate:
            A("s_branch L_flag2")
            L("L_done2")
        A(f"s_cmp_lg_u32 {self.sF}, 3")
        A("s_cbranch_scc1 L_sm")
        A("s_nop 4")
        self.stamp(6)
        for p in range(4):
            a = self.AC+2*p
            A(f"v_pk_fma_f32 {self.v2(a)}, {self.v2(a)}, {self.v2(fa[p//2])}, {self.v2(PBF+2*p)} op_sel_hi:[1,0,1]")
        OUT = self.AO
        for p in range(4):
            a = self.AC+2*p
            A(f"v_cvt_pk_bf16_f32 v{OUT+p}, v{a}, v{a+1}")
        A(f"s_cmp_eq_u32 {self.sRole}, 0")
        A("s_cselect_b64 s[2:3], 1, 0")
        for h in range(2):
            A(f"v_permlane16_swap_b32 v{OUT+h}, v{OUT+2+h}")
        A(f"buffer_store_dwordx4 {self.v4(OUT)}, v{self.vOut}, {self.sO}, 0 offen {self.oflags}")
        A("s_cbranch_scc0 L_fin")
        A("s_mov_b64 exec, 1")
        A(f"buffer_store_dword v{self.vTag}, off, {self.sW}, 0 offset:3968")
        A("s_mov_b64 exec, -1")
    def tl(self):
        A = self.A
        A(f"buffer_load_dword v{self.vTag}, off, {self.sW}, 0 offset:3968")
        A(f"buffer_load_dword v{self.vDum}, off, {self.sO}, 0")
        if not self.notree:
            A(f"s_lshl_b32 s3, {self.sWave}, 10")
            A(f"s_add_u32 m0, s3, {TK}")
            A("s_nop 0")
            A(f"buffer_load_dwordx4 v1, {self.sKT}, s3 offen lds")
            A(f"s_add_u32 m0, s3, {TV}")
            A("s_nop 0")
            A(f"buffer_load_dwordx4 v1, {self.sVT}, s3 offen lds")
            A(f"buffer_load_dwordx2 {self.v2(self.vMask)}, v2, {self.sM}, 0 offen")
    def tree(self):
        A, L, C = self.A, self.L, self.C
        T0, TS, St, LR, FM = self.T0, self.TS, self.St, self.LR, self.FM
        nt = not self.notree
        L("L_e0")
        C("epoch and tree data landed: say hello {die id, tag} with a plain store")
        A("s_waitcnt vmcnt(0)")
        A(f"v_add_u32 v{self.vTag}, 1, v{self.vTag}")
        A(f"s_getreg_b32 {self.sPw}, hwreg(HW_REG_XCC_ID)")
        A(f"v_mov_b32 v{FM}, {self.sPw}"); A(f"v_mov_b32 v{FM+1}, v{self.vTag}")
        A("s_mov_b64 exec, 1")
        A(f"buffer_store_dwordx2 {self.v2(FM)}, off, {self.sW}, {self.sSend} offset:1280")
        A("s_mov_b64 exec, -1")
        A("s_branch L_k")
        L("L_e1")
        if nt:
            for s in range(4):
                A(f"v_add_u32 v{T0+s}, {TK}, v{self.vKR[s]}")
                A(f"ds_read_b128 {self.v4(self.AO+s*4)}, v{T0+s}")
            self.qk(TS)
        A("s_branch L_k")
        L("L_e2")
        if nt:
            big = -1.0e9 * math.sqrt(128.0)
            B0 = LR
            A(f"v_lshlrev_b32 v{B0}, 16, v{self.vMask}"); A(f"v_and_b32 v{B0+1}, 0xffff0000, v{self.vMask}")
            A(f"v_lshlrev_b32 v{B0+2}, 16, v{self.vMask+1}"); A(f"v_and_b32 v{B0+3}, 0xffff0000, v{self.vMask+1}")
            for r in range(4): A(f"v_sub_f32 v{B0+r}, 1.0, v{B0+r}")
            for r in range(4): A(f"v_mul_f32 v{B0+r}, 0x{f2u(big):08x}, v{B0+r}")
            for qh in range(2):
                for r in range(4):
                    A(f"v_add_f32 v{TS+qh*4+r}, v{TS+qh*4+r}, v{B0+r}")
                A(f"v_max3_f32 v{self.mT+qh}, v{TS+qh*4}, v{TS+qh*4+1}, v{TS+qh*4+2}")
                A(f"v_max_f32 v{self.mT+qh}, v{self.mT+qh}, v{TS+qh*4+3}")
            self.xlane(self.mT, self.mT+1, "v_max_f32")
        A("s_branch L_k")
        L("L_e3")
        if nt:
            for qh in range(2):
                A(f"v_mul_f32 v{self.mT+qh}, {self.sC}, v{self.mT+qh}")
            for qh in range(2):
                for r in range(4):
                    A(f"v_fma_f32 v{TS+qh*4+r}, v{TS+qh*4+r}, {self.sC}, -v{self.mT+qh}")
            for r in range(4):
                for qh in range(2):
                    A(f"v_exp_f32 v{TS+qh*4+r}, v{TS+qh*4+r}")
            A("s_nop 0")
            for qh in range(2):
                A(f"v_add_f32 v{self.lT+qh}, v{TS+qh*4}, v{TS+qh*4+1}")
                A(f"v_add_f32 v{T0+qh}, v{TS+qh*4+2}, v{TS+qh*4+3}")
            A(f"v_pk_add_f32 {self.v2(self.lT)}, {self.v2(self.lT)}, {self.v2(T0)}")
            for qh in range(2):
                for h in range(2):
                    A(f"v_cvt_pk_bf16_f32 v{LR+2+qh*2+h}, v{TS+qh*4+2*h}, v{TS+qh*4+2*h+1}")
        A("s_branch L_k")
        L("L_e4")
        A(f"buffer_load_dwordx2 {self.v2(FM+2)}, off, {self.sW}, {self.sRecv} offset:1280 {self.nearfl}")
        if nt:
            A(f"ds_read_b64_tr_b16 {self.v2(LR)}, v{self.vTR}")
            self.xlane(self.lT, self.lT+1, "v_add_f32")
            A("s_waitcnt lgkmcnt(0)")
            for qh in range(2):
                A(f"v_mfma_f32_16x16x16_bf16 {self.v4(TS+4*qh)}, {self.v2(LR)}, {self.v2(LR+2+2*qh)}, 0")
        A("s_branch L_k")
        L("L_e5")
        C("partner's hello equal to mine: same die, the hand-off may stay in this die's L2")
        A("s_waitcnt vmcnt(0)")
        A(f"v_cmp_eq_u64 vcc, {self.v2(FM)}, {self.v2(FM+2)}")
        A("s_cmp_eq_u64 vcc, -1")
        A(f"s_cselect_b32 {self.sPw}, {0 if self.forcefar else 1}, 0")
        A("s_branch L_k")

    def gen(self):
        A, L, C = self.A, self.L, self.C
        self.o.append(HEADER + f"; @launch grid=(256,1,1) block=(320,1,1) lds={LDS}")
        self.o.append('.amdgcn_target "amdgcn-amd-amdhsa--gfx950"')
        self.o.append(".text"); self.o.append(f".globl {KNAME}"); self.o.append(".p2align 8")
        self.o.append(f".type {KNAME},@function"); L(KNAME)
        self.stamp(0)
        if self.padto: A("s_memrealtime s[96:97]")
        A("s_load_dwordx16 s[4:19], s[0:1], 0")
        A("s_load_dwordx2 s[20:21], s[0:1], 64")
        A("s_cmp_ge_u32 s2, 256")
        A("s_cbranch_scc1 L_end")
        A("v_lshrrev_b32 v8, 6, v0")
        A("v_and_b32 v0, 63, v0")
        if self.mapmode == 0:
            A(f"s_and_b32 {self.sRole}, s2, 1"); A(f"s_lshr_b32 {self.sPair}, s2, 1")
        else:
            b = self.mapmode
            A(f"s_bfe_u32 {self.sRole}, s2, {0x10000+b}")
            A(f"s_lshr_b32 {self.sPair}, s2, {b+1}"); A(f"s_lshl_b32 {self.sPair}, {self.sPair}, {b}")
            A(f"s_and_b32 s3, s2, {(1<<b)-1}"); A(f"s_or_b32 {self.sPair}, {self.sPair}, s3")
        A(f"v_readfirstlane_b32 {self.sWave}, v8")
        A(f"s_lshl1_add_u32 s22, {self.sPair}, {self.sRole}")
        A("s_lshl_b32 s22, s22, 18")
        A("v_lshrrev_b32 v9, 4, v0")
        A("v_lshlrev_b32 v10, 1, v9"); A("v_xor_b32 v10, v10, v0"); A("v_and_b32 v10, 15, v10")
        A(f"s_sub_u32 {self.sWave}, {self.sWave}, 1")
        A("s_cbranch_scc0 L_comp")
        self.loader()
        L("L_comp")
        A(f"s_lshl_b32 {self.sW4}, {self.sWave}, 12")
        C("tree DMA source offset: rows 4w+g")
        A("v_lshlrev_b32 v1, 8, v9"); A("v_lshl_add_u32 v1, v10, 4, v1")
        A(f"s_and_b32 s2, {self.sWave}, 1"); A("s_lshl_b32 s2, s2, 7"); A("v_xor_b32 v1, s2, v1")
        C("mask offset: (q%8)*16 + g*8 (+128 for g>=2: out of range)")
        A("v_and_b32 v2, 7, v0"); A("v_lshlrev_b32 v2, 4, v2"); A("v_lshl_add_u32 v2, v9, 3, v2")
        A("v_lshrrev_b32 v11, 5, v0"); A("v_lshl_add_u32 v2, v11, 7, v2")
        C("K/Q read lane bases: rho*256 + ((4s+g)^(2*(rho%8)))*16")
        A("v_and_b32 v10, 15, v0"); A("v_and_b32 v11, 7, v0"); A("v_lshlrev_b32 v11, 1, v11"); A("v_xor_b32 v11, v11, v9")
        A("v_lshlrev_b32 v3, 8, v10"); A("v_lshl_add_u32 v3, v11, 4, v3")
        for s in range(1, 4): A(f"v_xor_b32 v{3+s}, {64*s}, v3")
        A(f"v_lshlrev_b32 v{self.vFo}, 4, v10")
        C("out offset: (16*(row&1)+q)*256 + role*128 + wave*32 + (row>>1)*16")
        A(f"v_and_b32 v{self.vOut}, 31, v0"); A(f"v_lshlrev_b32 v{self.vOut}, 8, v{self.vOut}")
        A("v_lshrrev_b32 v11, 5, v0"); A(f"v_lshl_add_u32 v{self.vOut}, v11, 4, v{self.vOut}")
        A(f"s_lshl2_add_u32 s2, {self.sRole}, {self.sWave}"); A("s_lshl_b32 s3, s2, 5"); A(f"v_add_u32 v{self.vOut}, s3, v{self.vOut}")
        C("transposed-read lane bases: row=l/4, c=l%4")
        A("v_lshrrev_b32 v10, 2, v0"); A("v_bfe_u32 v12, v0, 1, 1"); A("v_and_b32 v13, 1, v0"); A("v_lshlrev_b32 v13, 3, v13")
        C(" tree V (256-B rows): row*256 + ((8*role+2w+c/2)^(2*(row%8)))*16 + (c%2)*8")
        A("s_lshl_b32 s2, s2, 1"); A("v_add_u32 v14, s2, v12"); A("v_and_b32 v11, 7, v10"); A("v_lshlrev_b32 v11, 1, v11"); A("v_xor_b32 v11, v11, v14")
        A("v_lshl_add_u32 v8, v10, 8, v13"); A("v_lshl_add_u32 v8, v11, 4, v8"); A(f"v_add_u32 v8, {TV}, v8")
        C(" V ring (128-B rows): row*128 + ((2w+c/2)^(row&6))*16 + (c%2)*8")
        A("v_and_b32 v14, 7, v14"); A("v_and_b32 v11, 6, v10"); A("v_xor_b32 v11, v11, v14")
        A("v_lshl_add_u32 v7, v10, 7, v13"); A("v_lshl_add_u32 v7, v11, 4, v7")
        A(f"v_lshlrev_b32 v{self.vL16}, 4, v0")
        A("v_lshlrev_b32 v11, 3, v0")
        A(f"v_add_u32 v{self.vPR}, {PR}, v11")
        A(f"s_lshr_b32 s2, {self.sW4}, 2"); A(f"v_add_u32 v{self.vPW}, s2, v{self.vPR}")
        A(f"v_add_u32 v{self.vLX}, {MX}, v11")
        A("s_waitcnt lgkmcnt(0)")
        A(f"s_lshl_b32 {self.sT}, {self.sPair}, 11")
        self.srd(36, 10, 11, self.sT, 2048)
        self.srd(40, 12, 13, self.sT, 2048)
        A(f"s_lshr_b32 {self.sT}, {self.sPair}, 3"); A(f"s_lshl_b32 {self.sT}, {self.sT}, 7")
        self.srd(44, 14, 15, self.sT, 128)
        A(f"s_lshl_b32 s3, {self.sPair}, 13")
        self.srd(48, 16, 17, "s3", 8192)
        A(f"s_lshl2_add_u32 {self.sT}, {self.sPair}, {self.sWave}"); A(f"s_lshl_b32 {self.sT}, {self.sT}, 12")
        self.srd(52, 20, 21, self.sT, 4096)
        A(f"s_lshl_b32 {self.sSend}, {self.sRole}, 11"); A(f"s_xor_b32 {self.sRecv}, {self.sSend}, 0x800")
        c = (128 ** -0.5) * math.log2(math.e)
        A(f"s_mov_b32 {self.sC}, 0x{f2u(c):08x}")
        A(f"s_mov_b32 {self.sRem}, {N}")
        A(f"s_mov_b32 {self.sRd}, {self.sW4}")
        A(f"s_mov_b32 {self.sIdx}, 0"); A(f"s_mov_b32 {self.sP}, 0")
        for qh in range(2):
            A(f"v_mov_b32 v{self.mR[qh]}, 0x{f2u(-3.0e38):08x}")
            A(f"v_mov_b32 v{self.lS[qh]}, 0")
        for s in range(4):
            A(f"v_add_u32 v{self.T0+s}, {QS}, v{self.vKR[s]}")
        A(f"s_mov_b32 s78, {self.sWave}")
        A("s_mov_b32 s76, 0x200000")
        if self.early: self.tl()
        self.compute()
        L("L_fin")
        if self.padto:
            L("L_pad")
            A("s_memrealtime s[98:99]"); A("s_waitcnt lgkmcnt(0)"); A("s_sub_u32 s98, s98, s96")
            A(f"s_cmp_lt_u32 s98, {self.padto}"); A("s_cbranch_scc1 L_pad")
        if self.stamps:
            A("s_waitcnt vmcnt(0)")
            self.stamp(7)
            A("s_getreg_b32 s3, hwreg(HW_REG_XCC_ID)")
            A("s_waitcnt lgkmcnt(0)")
            A("v_mov_b32 v10, 0")
            for k in range(self.nstamp):
                A(f"v_writelane_b32 v10, s{80+2*k}, {k}")
            A("v_writelane_b32 v10, s76, 12"); A(f"v_writelane_b32 v10, {self.sPw}, 11")
            A("v_writelane_b32 v10, s3, 14")
            A(f"v_writelane_b32 v10, {self.sRole}, 15")
            A(f"v_writelane_b32 v10, {self.sPair}, 13")
            A(f"s_lshl_b32 s2, {self.sPair}, 1"); A(f"s_add_u32 s2, s2, {self.sRole}"); A("s_lshl_b32 s2, s2, 2"); A(f"s_add_u32 s2, s2, {self.sWave}")
            A("s_lshl_b32 s2, s2, 6"); A("s_add_u32 s2, s2, 0x800000")
            self.srd(52, 20, 21, None, 0x1000000)
            A("v_lshlrev_b32 v11, 2, v0")
            A("v_cmp_gt_u32 vcc, 16, v0")
            A("s_and_saveexec_b64 s[22:23], vcc")
            A(f"buffer_store_dword v10, v11, {self.sW}, s2 offen")
        L("L_end")
        A("s_endpgm")
        self.tree()
        self.o.append('.section .rodata,"a"'); self.o.append(".p2align 6"); self.o.append(f".amdhsa_kernel {KNAME}")
        for d in ("next_free_vgpr 256", "next_free_sgpr 102", "accum_offset 256", "group_segment_fixed_size 0", "kernarg_size 72",
                  "user_sgpr_count 2", "user_sgpr_kernarg_segment_ptr 1", "system_sgpr_workgroup_id_x 1"):
            self.o.append("  .amdhsa_"+d)
        self.o.append(".end_amdhsa_kernel")
        return self.finish()

    def finish(self):
        def build(nseg):
            out = []
            for l in self.o:
                if l == "@WARMCALL":
                    if self.warm:
                        out.append("  ; instruction-cache warm-up: hop (EXEC=0) through code this workgroup runs later")
                        out.append(f"  s_cmp_ge_u32 s78, {nseg}")
                        out.append("  s_cbranch_scc1 L_hskip")
                        out.append("  s_mov_b64 exec, 0")
                        for k in range(nseg):
                            out.append(f"  s_cmp_eq_u32 s78, {k}")
                            out.append(f"  s_cbranch_scc1 L_h{k*self.seg}")
                        out.append("L_hret:")
                        out.append("  s_mov_b64 exec, -1")
                        out.append("  s_add_u32 s78, s78, 4")
                        out.append("L_hskip:")
                        out.append("@HOPON")
                else: out.append(l)
            return out
        if not self.warm:
            return "\n".join(l for l in build(0) if not l.startswith("@"))+"\n"
        nseg = 1
        while True:
            base = build(nseg)
            tmp = []
            for l in base:
                if l.startswith("@"): continue
                tmp.append(l)
                if l == "L_hret:": tmp += [f"L_h{k*self.seg}:" for k in range(nseg)]
            sz = sizes_of(tmp)
            res = []; addr = 0; k = 0; nh = 0; on = False; lastline = -1; intext = True
            for l in base:
                if l == "@HOPON": on = True; lastline = addr//self.warm; continue
                if l == "@HOPOFF": on = False; continue
                if l.startswith(".section"): intext = False
                if intext and isinstr(l):
                    if on and addr//self.warm != lastline:
                        lastline = addr//self.warm
                        res.append(("hop", nh)); nh += 1; addr += 4
                    addr += sz[k]; k += 1
                res.append(l)
            need = -(-nh//self.seg)
            if need <= nseg: break
            nseg = need
        start = res.index("L_hret:")
        order = [x[1] for x in res[start:] if isinstance(x, tuple)] + [x[1] for x in res[:start] if isinstance(x, tuple)]
        out = []
        for x in res:
            if isinstance(x, tuple):
                p = order.index(x[1])
                out.append(f"L_h{p}:")
                last = (p+1) % self.seg == 0 or p+1 == nh
                out.append(f"  s_cbranch_execz {'L_hret' if last else 'L_h%d' % (p+1)}")
            else:
                out.append(x)
                if x == "L_hret:":
                    out += [f"L_h{k*self.seg}:" for k in range(nseg) if k*self.seg >= nh]
        return "\n".join(out)+"\n"

def sizes_of(lines):
    import subprocess, re, tempfile
    d = tempfile.mkdtemp()
    open(d+"/a.s", "w").write("\n".join(lines)+"\n")
    subprocess.run(["clang", "-x", "assembler", "-target", "amdgcn-amd-amdhsa", "-mcpu=gfx950", "-c", d+"/a.s", "-o", d+"/a.o"], check=True)
    dis = subprocess.run(["llvm-objdump", "-d", "--mcpu=gfx950", d+"/a.o"], capture_output=True, text=True).stdout
    sz = []
    for l in dis.splitlines():
        m = re.search(r"// ([0-9A-F]{12}): ((?:[0-9A-F]{8} ?)+)", l)
        if m: sz.append(4*len(m.group(2).split()))
    return sz
def isinstr(l):
    return l.startswith("  ") and not l.startswith("  ;") and not l.startswith("  .")

if __name__ == "__main__":
    out = sys.argv[1]
    kw = eval("dict(" + (sys.argv[2] if len(sys.argv) > 2 else "") + ")")
    open(out, "w").write(Gen(**kw).gen())
```

```python
import sys, math, struct
KNAME = "standalone__tree_speculative_verify_tree_attention_over_candidate_token_tree__sampling_kernel"
HEADER = """; Kernarg layout for this problem (72 bytes, ptrs only, base s[0:1]):
"""
def f2u(x): return struct.unpack("<I", struct.pack("<f", x))[0]
RINGB = 81920
PR, QS, TK, TV, MX, LX, LDS = 81920, 81920, 147456, 151552, 155648, 157696, 159744
N = 16

class Gen:
    def __init__(self, flags="nt", stamps=False, padto=0, mapmode=3, D=21, DV=None, nb=0, D2=32, treeat=5,
                 nohand=False, notree=False, noq=False, nopart=False, prio=3, oflags="", warm=0, seg=2,
                 frac=(0,)*8, prof=False, f0=3, forcelate=False, sfl='sc1', lfl='sc1', dg='DFHL', catch=6, forcefar=False, nearfl='nt', fs=4, fbk=(22,26,22,26,19,22,22,25), fbfl='nt', gl=0, Di=0, rewarm=False, noout=False, stag=0, touch=0, ask=4, use=2, sfl2='', qfl='', tfl='', tdg='KVME', vhalf=False, nt2=0, fs2=10, D3=None, every=False, wsdata=True, fakeout=0, mbo=True):
        self.mbo = mbo
        self.fakeout = fakeout
        self.wsdata = wsdata
        self.nt2, self.fs2, self.D3, self.every = nt2, fs2, D3, every
        self.qfl, self.tfl, self.tdg, self.vhalf = qfl, tfl, tdg, vhalf
        self.sfl2 = sfl2
        self.ask = ask; self.use = use
        self.stag = stag; self.touch = touch
        self.noout = noout
        self.Di = Di; self.rewarm = rewarm
        self.gl = gl
        self.fbk = fbk; self.fbfl = fbfl
        self.nearfl = nearfl; self.fs = fs
        self.forcefar = forcefar; pc0 = pcn = 2; early = True
        self.sfl, self.lfl, self.dg, self.pc0, self.pcn, self.catch, self.early = sfl, lfl, dg, pc0, pcn, catch, early
        self.o = []
        self.flags, self.stamps, self.padto, self.mapmode = flags, stamps, padto, mapmode
        self.D, self.DV, self.nb, self.D2, self.treeat = D, DV or D, nb, D2, treeat
        self.nohand, self.notree, self.noq, self.nopart, self.prio = nohand, notree, noq, nopart, prio
        self.oflags, self.warm, self.seg, self.frac, self.prof, self.f0, self.forcelate = oflags, warm, seg, frac, prof, f0, forcelate
        assert 14 <= D <= 31 and 14 <= self.DV <= 31 and 17 <= D2 <= 32
        self.uid = 0
    def A(self, s): self.o.append("  "+s)
    def L(self, s): self.o.append(s+":")
    def C(self, s): self.o.append("  ; "+s)
    vKR = (3, 4, 5, 6); vVR = 7; vTR = 8; vPR = 9; vPW = 10; vTag = 11
    mR = (12, 13); mC = (14, 15); lS = (16, 17); T0 = 18
    St = 24; SS = 32; AO = 160; PO = 176; QR = 176; AC = 208; LR = 216; PK = 224
    vL16 = 228; vDum = 229; vMask = 230; vLX = 232; vOut = 233; vFo = 234
    TS = 236
    fa = (244, 246); FM = 248
    mT = 252; lT = 254; ft = (56, 58)
    DM = 32; PBF = 36; fb = (44, 46); tw = 48; GM = 52
    @staticmethod
    def v4(r): return f"v[{r}:{r+3}]"
    @staticmethod
    def v2(r): return f"v[{r}:{r+1}]"
    def Q(self, qh, s): return self.v4(self.QR + (qh*4+s)*4)
    sX, sQ, sKT, sVT, sM, sO, sW = "s[24:27]", "s[32:35]", "s[36:39]", "s[40:43]", "s[44:47]", "s[48:51]", "s[52:55]"
    sVb = (28, 29)
    sPair, sRole, sWave, sSk, sRem, sA, sM0, sRd, sIdx, sP, sW4, sT = ["s%d" % i for i in range(60, 72)]
    sC, s4k, sF, sPw, sCnt, sSend, sRecv = "s72", "s73", "s74", "s75", "s79", "s30", "s31"
    nstamp = 0
    def stamp(self, idx):
        if self.stamps:
            r = 80 + 2*idx
            self.nstamp = max(self.nstamp, idx+1)
            self.A(f"s_memrealtime s[{r}:{r+1}]")
    def ringadv(self, r):
        self.A(f"s_add_u32 {r}, {r}, 0x4000")
        self.A(f"s_cmp_ge_u32 {r}, {RINGB}")
        self.A(f"s_cselect_b32 s77, {RINGB}, 0")
        self.A(f"s_sub_u32 {r}, {r}, s77")
    def xlane(self, a, b, op):
        A = self.A
        A("s_nop 1")
        A(f"v_permlane32_swap_b32 v{a}, v{b}")
        A(f"{op} v{a}, v{a}, v{b}")
        A(f"v_mov_b32 v{b}, v{a}")
        A("s_nop 1")
        A(f"v_permlane16_swap_b32 v{a}, v{b}")
        A(f"{op} v{a}, v{a}, v{b}")
        A(f"v_mov_b32 v{b}, v{a}")
        A("s_nop 1")
        A(f"v_permlane32_swap_b32 v{a}, v{b}")
    def srd(self, d, lo, hi, add, nbytes):
        A = self.A
        if add is None:
            A(f"s_mov_b32 s{d}, s{lo}"); A(f"s_mov_b32 s{d+1}, s{hi}")
        else:
            A(f"s_add_u32 s{d}, s{lo}, {add}"); A(f"s_addc_u32 s{d+1}, s{hi}, 0")
        A(f"s_mov_b32 s{d+2}, {nbytes}")
        A(f"s_mov_b32 s{d+3}, 0x20000")
    def rload(self, ins):
        if self.nopart: return
        if self.nearfl == 'sc1':
            self.A(ins+" sc1"); return
        self.uid += 1
        u = self.uid
        self.A(f"s_cmp_eq_u32 {self.sPw}, 1")
        self.A(f"s_cbranch_scc1 L_r{u}")
        self.A(ins+" sc1")
        self.A(f"s_branch L_rr{u}")
        self.L(f"L_r{u}")
        self.A(ins+" "+self.nearfl)
        self.L(f"L_rr{u}")
    def qk(self, dst=None):
        A = self.A
        dst = self.St if dst is None else dst
        for s in range(4):
            A(f"s_waitcnt lgkmcnt({3-s})")
            for qh in range(2):
                d = self.v4(dst+qh*4)
                A(f"v_mfma_f32_16x16x32_bf16 {d}, {self.v4(self.AO+s*4)}, {self.Q(qh,s)}, {'0' if s == 0 else d}")
    def pcalc(self):
        A = self.A
        A(f"s_set_gpr_idx_on {self.sIdx}, gpr_idx(SRC0)")
        for qh in range(2):
            for r in range(4):
                A(f"v_fma_f32 v{self.St+qh*4+r}, v{self.SS+qh*4+r}, {self.sC}, -v{self.mC[qh]}")
        A("s_set_gpr_idx_off")
        for r in range(4):
            for qh in range(2):
                A(f"v_exp_f32 v{self.St+qh*4+r}, v{self.St+qh*4+r}")
        A(f"s_add_u32 {self.sIdx}, {self.sIdx}, 8")
        for r in range(4):
            for qh in range(2):
                A(f"v_add_f32 v{self.lS[qh]}, v{self.lS[qh]}, v{self.St+qh*4+r}")
        for qh in range(2):
            for h in range(2):
                A(f"v_cvt_pk_bf16_f32 v{self.PK+qh*2+h}, v{self.St+qh*4+2*h}, v{self.St+qh*4+2*h+1}")
        A(f"ds_write2st64_b64 v{self.vPW}, {self.v2(self.PK)}, {self.v2(self.PK+2)} offset0:0 offset1:1")
        A(f"v_add_u32 v{self.vPW}, 0x1000, v{self.vPW}")

    def ldk(self, i):
        self.A(f"buffer_load_dwordx4 v{1+i%2}, {self.sX}, {self.sA} offen offset:{i*256} {self.flags} lds")
    def ldv(self, j):
        self.A(f"buffer_load_dwordx4 v{5+j//8}, {self.sX}, {self.sA} offen offset:{(j%8)*512} {self.flags} lds")
    def m0k(self, i): self.A(f"s_mov_b32 m0, {self.sM0}" if i == 0 else "s_addk_i32 m0, 0x300")
    def m0v(self, j): self.A(f"s_mov_b32 m0, {self.sM0}" if j == 0 else ("s_addk_i32 m0, 0x1200" if j == 8 else "s_addk_i32 m0, 0x200"))
    def pstamp(self):
        if self.prof:
            A = self.A
            A("s_waitcnt lgkmcnt(0)"); A("s_mov_b32 m0, s79"); A("v_writelane_b32 v12, s44, m0"); A("s_add_u32 s79, s79, 1"); A("s_memrealtime s[44:45]")
    def gated(self, D, m0, ld, first=None, fs=None):
        A, L = self.A, self.L
        fr = any(self.frac) or self.fbk
        if self.fbk:
            self.uid += 1
            A(f"s_bitcmp1_b32 {self.sRem}, 0")
            if self.every:
                u = self.uid
                A("v_add_u32 v21, -1, v15")
                A("v_add_u32 v15, 1, v15")
                A(f"s_cbranch_scc0 L_e{u}a")
                A("v_cmp_ge_u32 vcc, v14, v21")
                A(f"buffer_load_ubyte v14, v0, s[56:59], 0 offen {self.fbfl}")
                A(f"s_branch L_e{u}b")
                L(f"L_e{u}a")
                A("v_cmp_ge_u32 vcc, v20, v21")
                A(f"buffer_load_ubyte v20, v0, s[56:59], 0 offen {self.fbfl}")
                L(f"L_e{u}b")
                A("s_bcnt1_i32_b64 s2, vcc")
                A("buffer_store_byte v15, v16, s[56:59], s76 offen")
                A("s_cmp_ge_u32 s2, s78")
                A("s_cselect_b64 vcc, -1, 0")
                A(f"s_branch L_f{u}")
            A(f"s_cbranch_scc0 L_f{self.uid}")
            A("v_cmp_ge_u32 vcc, v14, v15")
            A("v_add_u32 v15, 1, v15")
            if self.gl:
                A("v_readlane_b32 s3, v14, 27")
                A("s_and_b32 s2, vcc_lo, 0x7ffffff")
                A("s_bcnt1_i32_b32 s2, s2")
                A("s_cmp_eq_u32 s3, 0"); A("s_cselect_b32 s3, 12, s3")
                A(f"s_mul_i32 s3, s3, {self.gl}"); A("s_lshl2_add_u32 s2, s2, s3")
                A("s_cmp_lg_u32 s76, 0")
                A(f"s_cbranch_scc1 L_fx{self.uid}")
                A("s_waitcnt lgkmcnt(0)")
                A("s_add_u32 s47, s46, 1")
                A("s_mov_b32 s3, 8")
                for x in range(8):
                    A(f"s_cmp_eq_u32 s{36+x}, s47"); A("s_addc_u32 s3, s3, 0")
                A(f"s_cmp_eq_u32 {self.sRem}, {2*N-1}"); A("s_cselect_b32 s3, 0, s3")
                A("v_mov_b32 v19, s3"); A("v_mov_b32 v17, s47")
                A("s_add_u32 s52, s52, 0x400"); A("s_addc_u32 s53, s53, 0"); A("s_add_u32 s54, s54, 0x400")
                for x in range(8):
                    A(f"s_load_dword s{36+x}, s[52:53], {x*128} glc")
                A("buffer_store_byte v19, v16, s[56:59], 0 offen offset:27")
                A("buffer_store_dword v17, v18, s[48:51], s54 offen sc1")
                L(f"L_fx{self.uid}")
            else:
                A("s_bcnt1_i32_b64 s2, vcc")
            A(f"buffer_load_ubyte v14, v0, s[56:59], 0 offen {self.fbfl}")
            A("buffer_store_byte v15, v16, s[56:59], s76 offen")
            A("s_cmp_ge_u32 s2, s78")
            A("s_cselect_b64 vcc, -1, 0")
            L(f"L_f{self.uid}")
        elif fr:
            A(f"s_bitcmp1_b32 s78, {self.sRem}"); A("s_cselect_b64 vcc, -1, 0")
        Dh = D + ((fs or self.fs) if fr else 0)
        assert Dh <= 32
        for i in range(16):
            m0(i)
            if fr:
                self.uid += 1
                A(f"s_waitcnt vmcnt({Dh-1})")
                A(f"s_cbranch_vccnz L_g{self.uid}")
            A(f"s_waitcnt vmcnt({D-1})")
            if fr: L(f"L_g{self.uid}")
            ld(i)
            if i == Dh-17:
                if first:
                    A(f"s_cmp_eq_u32 {self.sRem}, {2*N-1}")
                    A(f"s_cbranch_scc1 {first}")
                A("s_barrier")
                if first: L(first)
        self.pstamp()
    def loader(self):
        A, L, C = self.A, self.L, self.C
        L("L_loader")
        C("K source lane offsets: g*4096 + (slot ^ 2g ^ 8*(i%2))*16 ; row i through the immediate offset")
        A("v_lshlrev_b32 v1, 12, v9"); A("v_lshl_add_u32 v1, v10, 4, v1")
        A("v_xor_b32 v2, 0x80, v1")
        if self.prio: A(f"s_setprio {self.prio}")
        A(f"s_mov_b32 {self.sA}, 0"); A("s_mov_b32 m0, 0")
        A("s_mov_b32 s26, 0x40000"); A("s_mov_b32 s27, 0x20000")
        A("s_waitcnt lgkmcnt(0)")
        A("s_add_u32 s24, s6, s22"); A("s_addc_u32 s25, s7, 0")
        fill = [f"s_lshl_b32 s3, {self.sPair}, 13", "s_add_u32 s32, s4, s3", "s_addc_u32 s33, s5, 0", "s_mov_b32 s34, 8192", "s_mov_b32 s35, 0x20000",
                "v_lshlrev_b32 v3, 8, v9", "v_lshl_add_u32 v3, v10, 4, v3", "v_xor_b32 v4, 0x80, v3", f"s_movk_i32 {self.s4k}, 0x1000",
                f"s_mov_b32 {self.sM0}, 0", f"s_mov_b32 {self.sRem}, {2*N-1}"]
        for i in range(16):
            self.ldk(i)
            if i < 15:
                A("s_addk_i32 m0, 0x300")
                if fill:
                    x = fill.pop(0); A(x)
                    if x.startswith("s_add_u32"): A(fill.pop(0))
                else: A("s_nop 0")
        if self.prof: A("s_memrealtime s[44:45]"); A("s_mov_b32 s79, 0"); A("s_mov_b32 s23, s2")
        if not self.noq:
            for h in range(2):
                A(f"s_mov_b32 m0, {QS+h*4096}"); A("s_nop 0")
                for x in range(4):
                    A(f"buffer_load_dwordx4 v{3+x%2}, {self.sQ}, {self.s4k if h else '0'} offen offset:{x*1024} {self.qfl} lds")
        if self.Di:
            A(f"s_movk_i32 {self.sA}, 0x4000"); A(f"s_mov_b32 {self.sM0}, {self.sA}"); A(f"s_mov_b32 {self.sRem}, {2*N-2}"); A("s_mov_b64 vcc, 0")
            ni = min(16, max(0, self.Di-24))
            for i in range(ni):
                self.m0k(i); A("s_nop 0"); self.ldk(i)
        C("V source lane offsets: u=l/8: (u%4)*4096 + (u/4)*256 + ((l%8) ^ (u&6))*16")
        A("v_lshrrev_b32 v7, 3, v0"); A("v_and_b32 v8, 6, v7"); A("v_xor_b32 v8, v8, v0"); A("v_and_b32 v8, 7, v8"); A("v_lshlrev_b32 v8, 4, v8")
        A("v_and_b32 v5, 3, v7"); A("v_lshl_add_u32 v5, v5, 12, v8"); A("v_lshrrev_b32 v7, 2, v7"); A("v_lshl_add_u32 v5, v7, 8, v5")
        A("v_add_u32 v6, 0x4000, v5")
        if self.fbk:
            A("s_lshr_b32 s76, s2, 3"); A("s_and_b32 s3, s2, 7"); A("s_lshl_b32 s3, s3, 5")
            self.srd(56, 18, 19, "s3", 32)
            A("v_mov_b32 v14, 0"); A(f"v_mov_b32 v15, {2 if self.every else 1}"); A("v_mov_b32 v20, 0"); A("v_lshlrev_b32 v16, 5, v0")
            pk = sum((t & 31) << (5*x) for x, t in enumerate(self.fbk))
            A("s_getreg_b32 s2, hwreg(HW_REG_XCC_ID)"); A("s_and_b32 s2, s2, 7"); A("s_mul_i32 s2, s2, 5")
            A(f"s_mov_b32 s30, 0x{pk & 0xffffffff:08x}"); A(f"s_mov_b32 s31, 0x{pk >> 32:08x}")
            A("s_lshr_b64 s[30:31], s[30:31], s2"); A("s_and_b32 s78, s30, 31")
            if self.gl:
                self.srd(48, 20, 21, "0x400000", 0x8000)
                A("s_mov_b32 s52, s48"); A("s_mov_b32 s53, s49"); A("s_lshl_b32 s54, s3, 2")
                A("s_load_dword s46, s[52:53], 0")
                A("v_lshlrev_b32 v18, 15, v0")
                A(f"s_lshl2_add_u32 s78, s78, {self.gl*12}")
                A("s_cmp_ge_u32 s76, 27"); A("s_cselect_b32 s76, 64, s76")
                for x in range(8): A(f"s_mov_b32 s{36+x}, 0")
        elif any(self.frac):
            A("s_getreg_b32 s2, hwreg(HW_REG_XCC_ID)"); A("s_and_b32 s2, s2, 7"); A("s_mov_b32 s78, 0")
            for x in range(8):
                m = 0
                for b in range(32):
                    if int((b+1)*self.frac[x]+1e-9) != int(b*self.frac[x]+1e-9): m |= 1 << b
                if m:
                    A(f"s_cmp_eq_u32 s2, {x}"); A(f"s_cselect_b32 s78, 0x{m:08x}, s78")
        if self.Di:
            for i in range(ni, 16):
                self.m0k(i); A(f"s_waitcnt vmcnt({self.Di-1})"); self.ldk(i)
            self.pstamp()
        L("L_lk")
        A(f"s_add_u32 {self.sA}, {self.sA}, 0x4000")
        self.ringadv(self.sM0)
        self.gated(self.D, self.m0k, self.ldk, first=None if self.Di else "L_lkb")
        A(f"s_sub_u32 {self.sRem}, {self.sRem}, 1")
        A(f"s_cmp_lg_u32 {self.sRem}, {N}")
        A("s_cbranch_scc1 L_lk")
        self.o.append("@HOPON")
        A("s_add_u32 s24, s8, s22"); A("s_addc_u32 s25, s9, 0")
        A(f"s_lshl_b32 {self.sT}, {self.sRole}, 7")
        A(f"s_xor_b32 {self.sA}, {self.sT}, 0x80")
        L("L_lv")
        self.ringadv(self.sM0)
        self.gated(self.DV, self.m0v, self.ldv)
        A(f"s_add_u32 {self.sA}, {self.sA}, 0x8000")
        A(f"s_sub_u32 {self.sRem}, {self.sRem}, 1")
        A(f"s_cmp_eq_u32 {self.sRem}, {N//2}")
        A(f"s_cselect_b32 {self.sA}, {self.sT}, {self.sA}")
        A(f"s_cmp_lg_u32 {self.sRem}, {self.nb or self.nt2}")
        A("s_cbranch_scc1 L_lv")
        if self.nt2:
            L("L_lw")
            self.ringadv(self.sM0)
            self.gated(self.D3 or self.DV, self.m0v, self.ldv, fs=self.fs2)
            A(f"s_add_u32 {self.sA}, {self.sA}, 0x8000")
            A(f"s_sub_u32 {self.sRem}, {self.sRem}, 1")
            A(f"s_cmp_lg_u32 {self.sRem}, 0")
            A("s_cbranch_scc1 L_lw")
        sig = -2; nb = self.nb
        for st in range(nb):
            self.ringadv(self.sM0)
            for i in range(16):
                j = st*16+i
                self.m0v(i)
                A(f"s_waitcnt vmcnt({self.D2-1})")
                self.ldv(i)
                if j - self.D2 == sig*16+15:
                    A("s_barrier"); sig += 1
            A(f"s_add_u32 {self.sA}, {self.sA}, 0x8000")
            self.pstamp()
        while sig < nb:
            A(f"s_waitcnt vmcnt({(nb-1-sig)*16})")
            self.pstamp()
            A("s_barrier"); sig += 1
        if self.gl:
            A(f"s_or_b32 s2, {self.sPair}, {self.sRole}"); A("s_cbranch_scc1 L_ne")
            A("buffer_store_dword v17, v18, s[48:51], 0 offen")
            L("L_ne")
        if self.prof:
            self.pstamp()
            A("v_writelane_b32 v12, s80, 60"); A(f"v_writelane_b32 v12, {self.sRole}, 61"); A("s_getreg_b32 s3, hwreg(HW_REG_XCC_ID)"); A("v_writelane_b32 v12, s3, 62")
            A("v_writelane_b32 v12, s23, 63")
            A("s_getreg_b32 s3, hwreg(HW_REG_HW_ID)"); A("v_writelane_b32 v12, s3, 59")
            self.srd(52, 20, 21, None, 0x1000000)
            A(f"s_lshl_b32 s2, {self.sPair}, 1"); A(f"s_add_u32 s2, s2, {self.sRole}"); A("s_lshl_b32 s2, s2, 8"); A("s_add_u32 s2, s2, 0x810000")
            A("v_lshlrev_b32 v13, 2, v0")
            A(f"buffer_store_dword v12, v13, {self.sW}, s2 offen")
        A("s_endpgm")
        self.o.append("@HOPOFF")

    def compute(self):
        A, L, C = self.A, self.L, self.C
        T0, LR, TS, St = self.T0, self.LR, self.TS, self.St
        LT = self.lS[0]
        fa, fb, tw, FM, GM, DM, PBF = self.fa, self.fb, self.tw, self.FM, self.GM, self.DM, self.PBF
        C("---- K phase")
        L("L_k")
        self.o.append("@WARMCALL")
        A("s_barrier")
        A(f"s_cmp_lg_u32 {self.sIdx}, 0")
        A("s_cbranch_scc1 L_k1")
        self.stamp(1)
        for qh in range(2):
            for s in range(4):
                A(f"ds_read_b128 {self.Q(qh,s)}, v{T0+s} offset:{qh*4096}")
        L("L_k1")
        for s in range(4):
            A(f"v_add_u32 v{T0+s}, {self.sRd}, v{self.vKR[s]}")
            A(f"ds_read_b128 {self.v4(self.AO+s*4)}, v{T0+s}")
        self.ringadv(self.sRd)
        self.qk()
        A("s_nop 7")
        for h in range(2):
            for qh in range(2):
                A(f"v_max3_f32 v{self.mR[qh]}, v{self.mR[qh]}, v{St+qh*4+2*h}, v{St+qh*4+2*h+1}")
        A(f"s_set_gpr_idx_on {self.sIdx}, gpr_idx(DST)")
        for k in range(8):
            A(f"v_mov_b32 v{self.SS+k}, v{St+k}")
        A("s_set_gpr_idx_off")
        A(f"s_add_u32 {self.sIdx}, {self.sIdx}, 8")
        A(f"s_sub_u32 {self.sRem}, {self.sRem}, 1")
        if self.stag:
            A(f"s_cmp_eq_u32 {self.sRem}, {self.sSk}")
            A("s_cbranch_scc1 L_tl")
        A(f"s_cmp_gt_u32 {self.sRem}, 7")
        A("s_cbranch_scc1 L_k")
        for rem, lab in ((7, "L_e0"), (5, "L_e1"), (4, "L_e2"), (3, "L_e3"), (2, "L_e4")):
            A(f"s_cmp_eq_u32 {self.sRem}, {rem}")
            A(f"s_cbranch_scc1 {lab}")
        A(f"s_cmp_lg_u32 {self.sRem}, 0")
        A("s_cbranch_scc1 L_k")
        C("---- phase change")
        self.stamp(2)
        self.xlane(self.mR[0], self.mR[1], "v_max_f32")
        A(f"s_lshr_b32 s2, {self.sW4}, 3")
        A(f"v_add_u32 v{T0}, s2, v{self.vLX}")
        A(f"ds_write_b64 v{T0}, {self.v2(self.mR[0])}")
        A(f"s_sub_u32 {self.sRd}, {self.sRd}, {self.sW4}")
        A(f"s_mov_b32 {self.sRem}, {N}")
        A(f"s_mov_b32 {self.sIdx}, 0")
        A(f"s_mov_b32 {self.sCnt}, {self.pc0}"); A(f"s_mov_b32 {self.sF}, 0")
        for r in range(0, 8, 2):
            A(f"v_mov_b64 {self.v2(self.AC+r)}, 0")
        A("s_waitcnt lgkmcnt(0)")
        A("s_barrier")
        for k in range(2):
            A(f"ds_read2st64_b64 {self.v4(LR+4*k)}, v{self.vLX} offset0:{2*k} offset1:{2*k+1}")
        A("s_waitcnt lgkmcnt(0)")
        for qh in range(2):
            A(f"v_max3_f32 v{self.mR[qh]}, v{LR+qh}, v{LR+2+qh}, v{LR+4+qh}")
            A(f"v_max_f32 v{self.mR[qh]}, v{self.mR[qh]}, v{LR+6+qh}")
            A(f"v_mul_f32 v{self.mC[qh]}, {self.sC}, v{self.mR[qh]}")
        L("L_pc")
        self.pcalc()
        A(f"s_sub_u32 {self.sCnt}, {self.sCnt}, 1")
        A(f"s_cmp_lg_u32 {self.sCnt}, 0")
        A("s_cbranch_scc1 L_pc")
        A(f"s_mov_b32 {self.sCnt}, {self.pcn}")
        A(f"s_cmp_lg_u32 {self.sIdx}, {8*N}")
        A("s_cbranch_scc1 L_vb")
        C("all P done: publish this wave's l")
        self.xlane(self.lS[0], self.lS[1], "v_add_f32")
        A(f"s_lshr_b32 s2, {self.sW4}, 3")
        A(f"v_add_u32 v{T0}, s2, v{self.vLX}")
        A(f"ds_write_b64 v{T0}, {self.v2(self.lS[0])} offset:2048")
        L("L_vb")
        A(f"s_mov_b32 {self.sSk}, 1")
        A("s_waitcnt lgkmcnt(0)")
        A("s_barrier")
        L("L_v")
        A(f"v_add_u32 v{T0+1}, {self.sP}, v{self.vPR}")
        A(f"v_add_u32 v{T0}, {self.sRd}, v{self.vVR}")
        for ks in range(4):
            for qh in range(2):
                A(f"ds_read2st64_b64 {self.v4(self.PO+(ks*2+qh)*4)}, v{T0+1} offset0:{ks*4+qh} offset1:{ks*4+2+qh}")
        self.ringadv(self.sRd)
        A(f"s_add_u32 {self.sP}, {self.sP}, 0x2000"); A(f"s_and_b32 {self.sP}, {self.sP}, 0xffff")
        A(f"s_sub_u32 {self.sRem}, {self.sRem}, 1")
        A(f"s_cmp_lg_u32 {self.sSk}, 0")
        A(f"s_mov_b32 {self.sSk}, 0")
        A("s_waitcnt lgkmcnt(7)")
        A("s_cbranch_scc1 L_v1")
        A("s_barrier")
        self.stamp(4)
        L("L_v1")
        for ks in range(4):
            for b in range(2):
                A(f"ds_read_b64_tr_b16 {self.v2(self.AO+ks*4+2*b)}, v{T0} offset:{(ks*2+b)*2048}")
        A(f"s_cmp_eq_u32 {self.sRem}, 0")
        for ks in range(4):
            A(f"s_waitcnt lgkmcnt({6-2*ks})")
            for qh in range(2):
                a = self.v4(self.AC+4*qh)
                A(f"v_mfma_f32_16x16x32_bf16 {a}, {self.v4(self.AO+ks*4)}, {self.v4(self.PO+(ks*2+qh)*4)}, {a}")
        A("s_cbranch_scc1 L_done")
        A(f"s_cmp_le_u32 {self.sRem}, {self.use}")
        A("s_cbranch_scc1 L_sm")
        A(f"s_cmp_ge_u32 {self.sRem}, 9")
        A("s_cbranch_scc1 L_pc")
        A(f"s_cmp_eq_u32 {self.sRem}, 8")
        A("s_cbranch_scc1 L_sw")
        A(f"s_cmp_eq_u32 {self.sRem}, {self.ask}")
        A("s_cbranch_scc1 L_ask")
        assert self.catch not in (8, self.ask) and self.use < self.catch < 8 and self.use < self.ask < 8
        A(f"s_cmp_eq_u32 {self.sRem}, {self.catch}")
        A(f"s_cselect_b32 {self.sSk}, 1, 0")
        A("s_branch L_v")
        MS = 32
        MR = 60
        L("L_sw")
        C("end of the partner's column half: l total; park the partial where the partner's output goes, and {w, check}")
        C("in the workspace; restart the accumulators. Partner's hello equal to mine: same die, may stay in its L2")
        for k in range(2):
            A(f"ds_read2st64_b64 {self.v4(LR+4*k)}, v{self.vLX} offset0:{4+2*k} offset1:{5+2*k}")
        A("s_waitcnt vmcnt(0)")
        A(f"v_cmp_eq_u64 vcc, {self.v2(FM)}, {self.v2(FM+2)}")
        A("s_mov_b32 s2, 0xffff0000"); A("s_mov_b32 s3, 0xffff0000")
        A("s_cmp_eq_u64 vcc, -1")
        A(f"s_cselect_b32 {self.sPw}, {0 if self.forcefar else 1}, 0")
        A("s_waitcnt lgkmcnt(0)")
        A(f"v_pk_add_f32 {self.v2(LR)}, {self.v2(LR)}, {self.v2(LR+2)}")
        A(f"v_pk_add_f32 {self.v2(LR+4)}, {self.v2(LR+4)}, {self.v2(LR+6)}")
        A(f"v_pk_add_f32 {self.v2(LT)}, {self.v2(LR)}, {self.v2(LR+4)}")
        for qh in range(2):
            A(f"v_rcp_f32 v{fa[qh]}, v{LT+qh}")
        for qh in range(2):
            A(f"v_log_f32 v{LR+qh}, v{LT+qh}")
        for p in range(4):
            a = self.AC+2*p
            A(f"v_pk_mul_f32 {self.v2(a)}, {self.v2(a)}, {self.v2(fa[p//2])} op_sel_hi:[1,0]")
        for p in range(4):
            a = self.AC+2*p
            A(f"v_cvt_pk_bf16_f32 v{MS+p}, v{a}, v{a+1}")
        A(f"v_pk_add_f32 {self.v2(LR)}, {self.v2(LR)}, {self.v2(self.mC[0])}")
        A(f"v_cndmask_b32 v{MS+4}, v{LR}, v{LR+1}, s[2:3]")
        for r in range(0, 8, 2):
            A(f"v_mov_b64 {self.v2(self.AC+r)}, 0")
        def chk(d, m):
            A(f"v_add3_u32 v{d}, v{m}, v{m+1}, v{m+2}")
            A(f"v_add3_u32 v{d}, v{m+3}, v{m+4}, v{d}")
            for r in (8, 4, 2, 1):
                A("s_nop 1")
                A(f"v_add_u32_dpp v{d}, v{d}, v{d} row_ror:{r} row_mask:0xf bank_mask:0xf")
            A(f"v_readfirstlane_b32 s2, v{self.vTag}")
            for ln in (0, 16, 32, 48):
                A(f"v_readlane_b32 s3, v{d}, {ln}")
                A("s_add_u32 s2, s2, s3")
        for p in range(4): A(f"v_xor_b32 v{MS+p}, v{MS+p}, v235")
        chk(MS+5, MS)
        A(f"v_writelane_b32 v{MS+4}, s2, 32")
        nxt = "L_v"
        if self.forcelate:
            A("s_branch L_v")
            L("L_flag2")
            nxt = "L_done2"
        A(f"s_cmp_eq_u32 {self.sPw}, 1")
        A("s_cbranch_scc1 L_sw1")
        for fl, lab in (("sc1", "L_sw1"), ("", None)):
            if not self.nopart:
                A(f"buffer_store_dwordx4 {self.v4(MS)}, v{self.vFo}, {self.sO if self.mbo else self.sW}, {self.sSend} offen {fl}")
                A(f"buffer_store_dword v{MS+4}, v{self.vL16}, {self.sW}, s28 offen {fl}")
            A(f"s_branch {nxt}")
            if lab: L(lab)
        C("take the partner's message (asked for earlier); ask again while its check word does not match")
        L("L_sm")
        if self.stamps:
            A(f"s_cmp_lg_u32 {self.sRem}, 1"); A("s_cbranch_scc1 L_sm0"); self.stamp(3); L("L_sm0")
        A(f"s_cmp_eq_u32 {self.sF}, 3")
        A("s_cbranch_scc1 L_v")
        A("s_waitcnt vmcnt(0)")
        chk(tw, MR)
        A(f"v_readfirstlane_b32 s3, v{MR+5}")
        A("s_cmp_eq_u32 s2, s3")
        if self.nohand: A("s_branch L_hdr")
        A("s_cbranch_scc1 L_hdr")
        A("s_sub_u32 s76, s76, 1")
        A("s_cbranch_scc1 L_hdr")
        L("L_ask")
        if not self.nopart:
            A(f"buffer_load_dwordx4 {self.v4(MR)}, v{self.vFo}, {self.sO if self.mbo else self.sW}, {self.sRecv} offen sc1")
            A(f"buffer_load_dword v{MR+4}, v{self.vDum}, {self.sW}, s29 offen sc1")
            A(f"buffer_load_dword v{MR+5}, off, {self.sW}, {self.s4k} sc1")
        A("s_branch L_smx")
        L("L_hdr")
        ft, mT, lT = self.ft, self.mT, self.lT
        PBF = 40; fb = (52, 54)
        A(f"v_mov_b32 v{MR+5}, v{MR+4}")
        for p in range(4): A(f"v_xor_b32 v{MR+p}, v{MR+p}, v235")
        A(f"v_permlane16_swap_b32 v{MR+4}, v{MR+5}")
        for qh in range(2):
            A(f"v_max3_f32 v{tw+qh}, v{self.mC[qh]}, v{MR+4+qh}, v{mT+qh}")
        for qh in range(2):
            A(f"v_sub_f32 v{fa[qh]}, v{self.mC[qh]}, v{tw+qh}")
            A(f"v_sub_f32 v{fb[qh]}, v{MR+4+qh}, v{tw+qh}")
            A(f"v_sub_f32 v{ft[qh]}, v{mT+qh}, v{tw+qh}")
        for qh in range(2):
            A(f"v_exp_f32 v{fa[qh]}, v{fa[qh]}"); A(f"v_exp_f32 v{fb[qh]}, v{fb[qh]}"); A(f"v_exp_f32 v{ft[qh]}, v{ft[qh]}")
        A(f"s_mov_b32 {self.sF}, 3")
        for qh in range(2):
            A(f"v_fma_f32 v{tw+qh}, v{LT+qh}, v{fa[qh]}, v{fb[qh]}")
        for qh in range(2):
            A(f"v_fmac_f32 v{tw+qh}, v{lT+qh}, v{ft[qh]}")
        for qh in range(2):
            A(f"v_rcp_f32 v{tw+qh}, v{tw+qh}")
        for p in range(4):
            r = MR+p
            A(f"v_lshlrev_b32 v{PBF+2*p}, 16, v{r}"); A(f"v_and_b32 v{PBF+2*p+1}, 0xffff0000, v{r}")
        for qh in range(2):
            A(f"v_mul_f32 v{fa[qh]}, v{fa[qh]}, v{tw+qh}"); A(f"v_mul_f32 v{fb[qh]}, v{fb[qh]}, v{tw+qh}"); A(f"v_mul_f32 v{ft[qh]}, v{ft[qh]}, v{tw+qh}")
        for p in range(4):
            A(f"v_pk_mul_f32 {self.v2(TS+2*p)}, {self.v2(TS+2*p)}, {self.v2(ft[p//2])} op_sel_hi:[1,0]")
        for p in range(4):
            A(f"v_pk_fma_f32 {self.v2(PBF+2*p)}, {self.v2(PBF+2*p)}, {self.v2(fb[p//2])}, {self.v2(TS+2*p)} op_sel_hi:[1,0,1]")
        L("L_smx")
        A(f"s_cmp_lg_u32 {self.sRem}, 0")
        A("s_cbranch_scc1 L_v")
        if self.forcelate: A("s_branch L_done2")
        L("L_done")
        self.stamp(5)
        if self.forcelate:
            A("s_branch L_flag2")
            L("L_done2")
        A(f"s_cmp_lg_u32 {self.sF}, 3")
        A("s_cbranch_scc1 L_sm")
        if self.mbo:
            C("every wave has taken its message out of the lines the output goes to")
            A("s_barrier"); A("s_nop 3")
        else: A("s_nop 4")
        self.stamp(6)
        for p in range(4):
            a = self.AC+2*p
            A(f"v_pk_fma_f32 {self.v2(a)}, {self.v2(a)}, {self.v2(fa[p//2])}, {self.v2(PBF+2*p)} op_sel_hi:[1,0,1]")
        OUT = self.AO
        for p in range(4):
            a = self.AC+2*p
            A(f"v_cvt_pk_bf16_f32 v{OUT+p}, v{a}, v{a+1}")
        A(f"s_or_b32 s2, {self.sRole}, {self.sWave}")
        A("s_cmp_eq_u32 s2, 0")
        for h in range(2):
            A(f"v_permlane16_swap_b32 v{OUT+h}, v{OUT+2+h}")
        if not self.noout: A(f"buffer_store_dwordx4 {self.v4(OUT)}, v{self.vOut}, {self.sO}, 0 offen {self.oflags}")
        A("s_cbranch_scc0 L_fin")
        A("s_mov_b64 exec, 1")
        A(f"buffer_store_dword v{self.vTag}, off, {self.sW}, 0 offset:768")
        A("s_mov_b64 exec, -1")
    def tl(self):
        A = self.A
        A(f"buffer_load_dword v{self.vTag}, off, {self.sW}, 0 offset:768")
        if 'W' in self.tdg: A(f"buffer_load_dword v23, off, {self.sO}, 0")
        if not self.notree:
            A(f"s_lshl_b32 s3, {self.sWave}, 10")
            A(f"s_add_u32 m0, s3, {TK}")
            A("s_nop 0")
            if 'K' in self.tdg: A(f"buffer_load_dwordx4 v1, {self.sKT}, s3 offen {self.tfl} lds")
            A(f"s_add_u32 m0, s3, {TV}")
            A("s_nop 0")
            if 'V' in self.tdg: A(f"buffer_load_dwordx4 v1, {self.sVT}, s3 offen {self.tfl} lds")
            if 'M' in self.tdg: A(f"buffer_load_dwordx2 {self.v2(self.vMask)}, v2, {self.sM}, 0 offen")
    def tree(self):
        A, L, C = self.A, self.L, self.C
        T0, TS, St, LR, FM = self.T0, self.TS, self.St, self.LR, self.FM
        nt = not self.notree and 'E' in self.tdg
        if self.stag:
            L("L_tl"); self.tl(); A("s_branch L_k")
        L("L_e0")
        C("epoch and tree data landed: say hello {die id, tag} with a plain store")
        A("s_waitcnt vmcnt(0)")
        A(f"v_add_u32 v{self.vTag}, 1, v{self.vTag}")
        A(f"v_lshl_add_u32 v235, v0, 7, v{self.vTag}"); A("s_mov_b32 s2, 0x9e3779b1"); A("v_mul_lo_u32 v235, v235, s2")
        A(f"s_getreg_b32 {self.sPw}, hwreg(HW_REG_XCC_ID)")
        A(f"v_mov_b32 v{FM}, {self.sPw}"); A(f"v_mov_b32 v{FM+1}, v{self.vTag}")
        A(f"s_cmp_lg_u32 {self.sWave}, 0")
        A("s_cbranch_scc1 L_k")
        A("s_mov_b64 exec, 1")
        A(f"buffer_store_dwordx2 {self.v2(FM)}, off, {self.sW}, s28 offset:256")
        A("s_mov_b64 exec, -1")
        A("s_branch L_k")
        L("L_e1")
        if nt:
            for s in range(4):
                A(f"v_add_u32 v{T0+s}, {TK}, v{self.vKR[s]}")
                A(f"ds_read_b128 {self.v4(self.AO+s*4)}, v{T0+s}")
            self.qk(TS)
        A("s_branch L_k")
        L("L_e2")
        if nt:
            big = -1.0e9 * math.sqrt(128.0)
            B0 = LR
            A(f"v_lshlrev_b32 v{B0}, 16, v{self.vMask}"); A(f"v_and_b32 v{B0+1}, 0xffff0000, v{self.vMask}")
            A(f"v_lshlrev_b32 v{B0+2}, 16, v{self.vMask+1}"); A(f"v_and_b32 v{B0+3}, 0xffff0000, v{self.vMask+1}")
            for r in range(4): A(f"v_sub_f32 v{B0+r}, 1.0, v{B0+r}")
            for r in range(4): A(f"v_mul_f32 v{B0+r}, 0x{f2u(big):08x}, v{B0+r}")
            for qh in range(2):
                for r in range(4):
                    A(f"v_add_f32 v{TS+qh*4+r}, v{TS+qh*4+r}, v{B0+r}")
                A(f"v_max3_f32 v{self.mT+qh}, v{TS+qh*4}, v{TS+qh*4+1}, v{TS+qh*4+2}")
                A(f"v_max_f32 v{self.mT+qh}, v{self.mT+qh}, v{TS+qh*4+3}")
            self.xlane(self.mT, self.mT+1, "v_max_f32")
        A("s_branch L_k")
        L("L_e3")
        if nt:
            for qh in range(2):
                A(f"v_mul_f32 v{self.mT+qh}, {self.sC}, v{self.mT+qh}")
            for qh in range(2):
                for r in range(4):
                    A(f"v_fma_f32 v{TS+qh*4+r}, v{TS+qh*4+r}, {self.sC}, -v{self.mT+qh}")
            for r in range(4):
                for qh in range(2):
                    A(f"v_exp_f32 v{TS+qh*4+r}, v{TS+qh*4+r}")
            A("s_nop 0")
            for qh in range(2):
                A(f"v_add_f32 v{self.lT+qh}, v{TS+qh*4}, v{TS+qh*4+1}")
                A(f"v_add_f32 v{T0+qh}, v{TS+qh*4+2}, v{TS+qh*4+3}")
            A(f"v_pk_add_f32 {self.v2(self.lT)}, {self.v2(self.lT)}, {self.v2(T0)}")
            for qh in range(2):
                for h in range(2):
                    A(f"v_cvt_pk_bf16_f32 v{LR+2+qh*2+h}, v{TS+qh*4+2*h}, v{TS+qh*4+2*h+1}")
        A("s_branch L_k")
        L("L_e4")
        A(f"buffer_load_dwordx2 {self.v2(FM+2)}, off, {self.sW}, s29 offset:256 sc1")
        if nt:
            A(f"ds_read_b64_tr_b16 {self.v2(LR)}, v{self.vTR}")
            self.xlane(self.lT, self.lT+1, "v_add_f32")
            A("s_waitcnt lgkmcnt(0)")
            for qh in range(2):
                A(f"v_mfma_f32_16x16x16_bf16 {self.v4(TS+4*qh)}, {self.v2(LR)}, {self.v2(LR+2+2*qh)}, 0")
        A("s_branch L_k")

    def gen(self):
        A, L, C = self.A, self.L, self.C
        self.o.append(HEADER + f"; @launch grid=(256,1,1) block=(320,1,1) lds={LDS}")
        self.o.append('.amdgcn_target "amdgcn-amd-amdhsa--gfx950"')
        self.o.append(".text"); self.o.append(f".globl {KNAME}"); self.o.append(".p2align 8")
        self.o.append(f".type {KNAME},@function"); L(KNAME)
        self.stamp(0)
        if self.padto: A("s_memrealtime s[96:97]")
        A("s_load_dwordx16 s[4:19], s[0:1], 0")
        if self.prof or self.gl: A("s_load_dwordx2 s[20:21], s[0:1], 64")
        A("s_cmp_ge_u32 s2, 256")
        A("s_cbranch_scc1 L_end")
        A("v_lshrrev_b32 v8, 6, v0")
        A("v_and_b32 v0, 63, v0")
        if self.mapmode == 0:
            A(f"s_and_b32 {self.sRole}, s2, 1"); A(f"s_lshr_b32 {self.sPair}, s2, 1")
        else:
            b = self.mapmode
            A(f"s_bfe_u32 {self.sRole}, s2, {0x10000+b}")
            A(f"s_lshr_b32 {self.sPair}, s2, {b+1}"); A(f"s_lshl_b32 {self.sPair}, {self.sPair}, {b}")
            A(f"s_and_b32 s3, s2, {(1<<b)-1}"); A(f"s_or_b32 {self.sPair}, {self.sPair}, s3")
        A(f"v_readfirstlane_b32 {self.sWave}, v8")
        A(f"s_lshl1_add_u32 s22, {self.sPair}, {self.sRole}")
        A("s_lshl_b32 s22, s22, 18")
        A("v_lshrrev_b32 v9, 4, v0")
        A("v_lshlrev_b32 v10, 1, v9"); A("v_xor_b32 v10, v10, v0"); A("v_and_b32 v10, 15, v10")
        A(f"s_sub_u32 {self.sWave}, {self.sWave}, 1")
        A("s_cbranch_scc0 L_comp")
        self.loader()
        L("L_comp")
        if not (self.prof or self.gl): A("s_load_dwordx2 s[20:21], s[0:1], 64")
        if self.touch:
            A(f"s_cmp_lg_u32 {self.sWave}, 0")
            A("s_cbranch_scc1 L_notouch")
            A("s_waitcnt lgkmcnt(0)")
            A("s_add_u32 s2, s8, s22"); A("s_addc_u32 s3, s9, 0")
            A("v_mov_b32 v20, s4"); A("v_mov_b32 v21, s5")
            for ln, r in enumerate((10, 12, 14, 18, 20, 2)[:self.touch-1]):
                A(f"v_writelane_b32 v20, s{r}, {ln+1}"); A(f"v_writelane_b32 v21, s{r+1}, {ln+1}")
            A(f"global_load_ubyte v{self.vDum}, v[20:21], off")
            L("L_notouch")
        A(f"s_lshl_b32 {self.sW4}, {self.sWave}, 12")
        C("tree DMA source offset: rows 4w+g")
        A("v_lshlrev_b32 v1, 8, v9"); A("v_lshl_add_u32 v1, v10, 4, v1")
        A(f"s_and_b32 s2, {self.sWave}, 1"); A("s_lshl_b32 s2, s2, 7"); A("v_xor_b32 v1, s2, v1")
        C("mask offset: (q%8)*16 + g*8 (+128 for g>=2: out of range)")
        A("v_and_b32 v2, 7, v0"); A("v_lshlrev_b32 v2, 4, v2"); A("v_lshl_add_u32 v2, v9, 3, v2")
        A("v_lshrrev_b32 v11, 5, v0"); A("v_lshl_add_u32 v2, v11, 7, v2")
        C("K/Q read lane bases: rho*256 + ((4s+g)^(2*(rho%8)))*16")
        A("v_and_b32 v10, 15, v0"); A("v_and_b32 v11, 7, v0"); A("v_lshlrev_b32 v11, 1, v11"); A("v_xor_b32 v11, v11, v9")
        A("v_lshlrev_b32 v3, 8, v10"); A("v_lshl_add_u32 v3, v11, 4, v3")
        for s in range(1, 4): A(f"v_xor_b32 v{3+s}, {64*s}, v3")
        A(f"v_lshlrev_b32 v{self.vFo}, 4, v0")
        C("out offset: (16*(row&1)+q)*256 + role*128 + wave*32 + (row>>1)*16")
        A(f"v_and_b32 v{self.vOut}, 31, v0"); A(f"v_lshlrev_b32 v{self.vOut}, 8, v{self.vOut}")
        A("v_lshrrev_b32 v11, 5, v0"); A(f"v_lshl_add_u32 v{self.vOut}, v11, 4, v{self.vOut}")
        A(f"s_lshl2_add_u32 s2, {self.sRole}, {self.sWave}"); A("s_lshl_b32 s3, s2, 5"); A(f"v_add_u32 v{self.vOut}, s3, v{self.vOut}")
        if self.fakeout == 1:
            A("s_lshl_b32 s3, s2, 10"); A(f"v_lshl_add_u32 v{self.vOut}, v0, 4, s3")
        if self.fakeout == 2:
            A(f"s_lshl_b32 s3, {self.sWave}, 11"); A(f"s_lshl_b32 s23, {self.sRole}, 7"); A("s_add_u32 s3, s3, s23")
            A("v_lshrrev_b32 v11, 3, v0"); A("v_and_b32 v12, 7, v0"); A("v_lshlrev_b32 v12, 4, v12"); A("v_lshl_add_u32 v11, v11, 8, v12"); A(f"v_add_u32 v{self.vOut}, s3, v11")
        if self.fakeout == 3:
            A(f"s_lshr_b32 s3, {self.sWave}, 1"); A("s_lshl_b32 s3, s3, 12"); A(f"s_lshl_b32 s23, {self.sRole}, 7"); A("s_add_u32 s3, s3, s23")
            A(f"s_and_b32 s23, {self.sWave}, 1"); A("s_lshl_b32 s23, s23, 6"); A("s_add_u32 s3, s3, s23")
            A("v_and_b32 v11, 15, v0"); A("v_lshrrev_b32 v12, 4, v0"); A("v_lshlrev_b32 v12, 4, v12"); A("v_lshl_add_u32 v11, v11, 8, v12"); A(f"v_add_u32 v{self.vOut}, s3, v11")
        C("transposed-read lane bases: row=l/4, c=l%4")
        A("v_lshrrev_b32 v10, 2, v0"); A("v_bfe_u32 v12, v0, 1, 1"); A("v_and_b32 v13, 1, v0"); A("v_lshlrev_b32 v13, 3, v13")
        C(" tree V (256-B rows): row*256 + ((8*role+2w+c/2)^(2*(row%8)))*16 + (c%2)*8")
        A("s_lshl_b32 s2, s2, 1"); A("v_add_u32 v14, s2, v12"); A("v_and_b32 v11, 7, v10"); A("v_lshlrev_b32 v11, 1, v11"); A("v_xor_b32 v11, v11, v14")
        A("v_lshl_add_u32 v8, v10, 8, v13"); A("v_lshl_add_u32 v8, v11, 4, v8"); A(f"v_add_u32 v8, {TV}, v8")
        C(" V ring (128-B rows): row*128 + ((2w+c/2)^(row&6))*16 + (c%2)*8")
        A("v_and_b32 v14, 7, v14"); A("v_and_b32 v11, 6, v10"); A("v_xor_b32 v11, v11, v14")
        A("v_lshl_add_u32 v7, v10, 7, v13"); A("v_lshl_add_u32 v7, v11, 4, v7")
        A("v_lshlrev_b32 v11, 3, v0")
        A(f"v_add_u32 v{self.vPR}, {PR}, v11")
        A(f"s_lshr_b32 s2, {self.sW4}, 2"); A(f"v_add_u32 v{self.vPW}, s2, v{self.vPR}")
        A(f"v_add_u32 v{self.vLX}, {MX}, v11")
        A("s_waitcnt lgkmcnt(0)")
        A(f"s_lshl_b32 {self.sT}, {self.sPair}, 11")
        self.srd(36, 10, 11, self.sT, 2048)
        self.srd(40, 12, 13, self.sT, 2048)
        A(f"s_lshr_b32 {self.sT}, {self.sPair}, 3"); A(f"s_lshl_b32 {self.sT}, {self.sT}, 7")
        self.srd(44, 14, 15, self.sT, 128)
        A(f"s_lshl_b32 s3, {self.sPair}, 13")
        self.srd(48, 16, 17, "s3", 8192)
        A(f"s_mul_i32 {self.sT}, {self.sPair}, 9216")
        self.srd(52, 20, 21, self.sT, 9216)
        A(f"s_lshl2_add_u32 {self.sSend}, {self.sRole}, {self.sWave}"); A(f"s_xor_b32 {self.sRecv}, {self.sSend}, 4")
        for r in (self.sSend, self.sRecv):
            A(f"s_add_u32 {r}, {r}, 1"); A(f"s_lshl_b32 {r}, {r}, 10")
        if self.mbo:
            C("mailbox: 8 whole lines of the receiver's output half per wave")
            A(f"s_lshl_b32 {self.sRecv}, {self.sWave}, 11"); A(f"s_lshl_b32 s2, {self.sRole}, 7"); A(f"s_add_u32 {self.sRecv}, {self.sRecv}, s2")
            A(f"s_xor_b32 {self.sSend}, {self.sRecv}, 0x80")
            A("v_lshrrev_b32 v11, 3, v0"); A(f"v_and_b32 v{self.vFo}, 7, v0"); A(f"v_lshlrev_b32 v{self.vFo}, 4, v{self.vFo}"); A(f"v_lshl_add_u32 v{self.vFo}, v11, 8, v{self.vFo}")
        A(f"s_mul_i32 s28, {self.sRole}, 384"); A("s_sub_u32 s29, 384, s28")
        A(f"s_lshl2_add_u32 {self.s4k}, {self.sWave}, s29"); A(f"s_add_u32 {self.s4k}, {self.s4k}, 0x80")
        C("header store offsets: lanes 0-31 w, lane 32 this wave's check word, the rest out of range")
        A(f"v_lshlrev_b32 v{self.vL16}, 2, v0"); A(f"s_lshl2_add_u32 s2, {self.sWave}, 0x80")
        A("v_cmp_lt_u32 vcc, 32, v0"); A("v_mov_b32 v11, 0x10000")
        A(f"v_writelane_b32 v{self.vL16}, s2, 32")
        A(f"v_cndmask_b32 v{self.vL16}, v{self.vL16}, v11, vcc")
        A(f"v_and_b32 v{self.vDum}, 31, v0"); A(f"v_lshlrev_b32 v{self.vDum}, 2, v{self.vDum}")
        c = (128 ** -0.5) * math.log2(math.e)
        A(f"s_mov_b32 {self.sC}, 0x{f2u(c):08x}")
        A(f"s_mov_b32 {self.sRem}, {N}")
        A(f"s_mov_b32 {self.sRd}, {self.sW4}")
        A(f"s_mov_b32 {self.sIdx}, 0"); A(f"s_mov_b32 {self.sP}, 0")
        for qh in range(2):
            A(f"v_mov_b32 v{self.mR[qh]}, 0x{f2u(-3.0e38):08x}")
            A(f"v_mov_b32 v{self.lS[qh]}, 0")
        for s in range(4):
            A(f"v_add_u32 v{self.T0+s}, {QS}, v{self.vKR[s]}")
        A(f"s_mov_b32 s78, {self.sWave}")
        A("s_mov_b32 s76, 0x200000")
        if self.stag:
            A(f"s_lshr_b32 s2, {self.sPair}, 3"); A(f"s_and_b32 s2, s2, {self.stag-1}"); A(f"s_sub_u32 {self.sSk}, {15 if self.stag > 4 else 13}, s2")
            if self.stag == 8: A(f"s_max_u32 {self.sSk}, {self.sSk}, 9")
        else: self.tl()
        self.compute()
        L("L_fin")
        if self.padto:
            L("L_pad")
            A("s_memrealtime s[98:99]"); A("s_waitcnt lgkmcnt(0)"); A("s_sub_u32 s98, s98, s96")
            A(f"s_cmp_lt_u32 s98, {self.padto}"); A("s_cbranch_scc1 L_pad")
        if self.stamps:
            A("s_waitcnt vmcnt(0)")
            self.stamp(7)
            A("s_getreg_b32 s3, hwreg(HW_REG_XCC_ID)")
            A("s_waitcnt lgkmcnt(0)")
            A("v_mov_b32 v10, 0")
            for k in range(self.nstamp):
                A(f"v_writelane_b32 v10, s{80+2*k}, {k}")
            A("v_writelane_b32 v10, s76, 12"); A(f"v_writelane_b32 v10, {self.sPw}, 11")
            A("v_writelane_b32 v10, s3, 14")
            A(f"v_writelane_b32 v10, {self.sRole}, 15")
            A(f"v_writelane_b32 v10, {self.sPair}, 13")
            A(f"s_lshl_b32 s2, {self.sPair}, 1"); A(f"s_add_u32 s2, s2, {self.sRole}"); A("s_lshl_b32 s2, s2, 2"); A(f"s_add_u32 s2, s2, {self.sWave}")
            A("s_lshl_b32 s2, s2, 6"); A("s_add_u32 s2, s2, 0x800000")
            self.srd(52, 20, 21, None, 0x1000000)
            A("v_lshlrev_b32 v11, 2, v0")
            A("v_cmp_gt_u32 vcc, 16, v0")
            A("s_and_saveexec_b64 s[22:23], vcc")
            A(f"buffer_store_dword v10, v11, {self.sW}, s2 offen")
        L("L_end")
        A("s_endpgm")
        self.tree()
        self.o.append('.section .rodata,"a"'); self.o.append(".p2align 6"); self.o.append(f".amdhsa_kernel {KNAME}")
        for d in ("next_free_vgpr 256", "next_free_sgpr 102", "accum_offset 256", "group_segment_fixed_size 0", "kernarg_size 72",
                  "user_sgpr_count 2", "user_sgpr_kernarg_segment_ptr 1", "system_sgpr_workgroup_id_x 1"):
            self.o.append("  .amdhsa_"+d)
        self.o.append(".end_amdhsa_kernel")
        return self.finish()

    def finish(self):
        def build(nseg):
            out = []
            for l in self.o:
                if l == "@WARMCALL":
                    if self.warm:
                        out.append("  ; instruction-cache warm-up: hop (EXEC=0) through code this workgroup runs later")
                        out.append(f"  s_cmp_ge_u32 s78, {nseg}")
                        out.append("  s_cbranch_scc1 L_hskip")
                        out.append("  s_mov_b64 exec, 0")
                        for k in range(nseg):
                            out.append(f"  s_cmp_eq_u32 s78, {k}")
                            out.append(f"  s_cbranch_scc1 L_h{k*self.seg}")
                        out.append("L_hret:")
                        out.append("  s_mov_b64 exec, -1")
                        out.append("  s_add_u32 s78, s78, 4")
                        out.append("L_hskip:")
                        out.append("@HOPON")
                else: out.append(l)
            return out
        if not self.warm:
            return "\n".join(l for l in build(0) if not l.startswith("@"))+"\n"
        nseg = 1
        while True:
            base = build(nseg)
            tmp = []
            for l in base:
                if l.startswith("@"): continue
                tmp.append(l)
                if l == "L_hret:": tmp += [f"L_h{k*self.seg}:" for k in range(nseg)]
            sz = sizes_of(tmp)
            res = []; addr = 0; k = 0; nh = 0; on = False; lastline = -1; intext = True
            for l in base:
                if l == "@HOPON": on = True; lastline = addr//self.warm; continue
                if l == "@HOPOFF": on = False; continue
                if l.startswith(".section"): intext = False
                if intext and isinstr(l):
                    if on and addr//self.warm != lastline:
                        lastline = addr//self.warm
                        res.append(("hop", nh)); nh += 1; addr += 4
                    addr += sz[k]; k += 1
                res.append(l)
            need = -(-nh//self.seg)
            if need <= nseg: break
            nseg = need
        start = res.index("L_hret:")
        order = [x[1] for x in res[start:] if isinstance(x, tuple)] + [x[1] for x in res[:start] if isinstance(x, tuple)]
        out = []
        for x in res:
            if isinstance(x, tuple):
                p = order.index(x[1])
                out.append(f"L_h{p}:")
                last = (p+1) % self.seg == 0 or p+1 == nh
                out.append(f"  s_cbranch_execz {'L_hret' if last else 'L_h%d' % (p+1)}")
            else:
                out.append(x)
                if x == "L_hret:":
                    out += [f"L_h{k*self.seg}:" for k in range(nseg) if k*self.seg >= nh]
        return "\n".join(out)+"\n"

def sizes_of(lines):
    import subprocess, re, tempfile
    d = tempfile.mkdtemp()
    open(d+"/a.s", "w").write("\n".join(lines)+"\n")
    subprocess.run(["clang", "-x", "assembler", "-target", "amdgcn-amd-amdhsa", "-mcpu=gfx950", "-c", d+"/a.s", "-o", d+"/a.o"], check=True)
    dis = subprocess.run(["llvm-objdump", "-d", "--mcpu=gfx950", d+"/a.o"], capture_output=True, text=True).stdout
    sz = []
    for l in dis.splitlines():
        m = re.search(r"// ([0-9A-F]{12}): ((?:[0-9A-F]{8} ?)+)", l)
        if m: sz.append(4*len(m.group(2).split()))
    return sz
def isinstr(l):
    return l.startswith("  ") and not l.startswith("  ;") and not l.startswith("  .")

if __name__ == "__main__":
    out = sys.argv[1]
    kw = eval("dict(" + (sys.argv[2] if len(sys.argv) > 2 else "") + ")")
    open(out, "w").write(Gen(**kw).gen())
```

```python
import sys, math, struct
KNAME = "standalone__tree_speculative_verify_tree_attention_over_candidate_token_tree__sampling_kernel"
HEADER = """; Kernarg layout for this problem (72 bytes, ptrs only, base s[0:1]):
"""
def f2u(x): return struct.unpack("<I", struct.pack("<f", x))[0]
RINGB = 81920
PR, QS, TK, TV, MX, LX, LDS = 81920, 81920, 147456, 151552, 155648, 157696, 159744
N = 16

class Gen:
    def __init__(self, flags="nt", stamps=False, padto=0, mapmode=3, D=21, DV=None, nb=0, D2=32, treeat=5,
                 nohand=False, notree=False, noq=False, nopart=False, prio=3, oflags="", warm=0, seg=2,
                 frac=(0,)*8, prof=False, f0=3, forcelate=False, sfl='sc1', lfl='sc1', dg='DFHL', catch=6, forcefar=False, nearfl='nt', fs=4, fbk=(22,25,22,26,19,22,21,24), fbfl='nt', gl=0, Di=0, rewarm=False, noout=False, stag=0, touch=0, ask=4, use=2, sfl2='', qfl='', tfl='', tdg='KVME', vhalf=False, nt2=0, fs2=10, D3=None, every=False, wsdata=True, fakeout=0, mbo=True, nosmall=False, clean=True, ac=False, acfl='sc1', cw=True, split=True, pre=0, nobar=True, pfl='', dbgt=False):
        self.dbgt = dbgt
        self.pfl = pfl
        self.pre = pre; self.nobar = nobar
        self.split = split
        self.cw = cw
        self.ac = ac; self.acfl = acfl; clean = clean or ac
        self.nosmall = nosmall; self.clean = clean
        self.mbo = mbo
        self.fakeout = fakeout
        self.wsdata = wsdata
        self.nt2, self.fs2, self.D3, self.every = nt2, fs2, D3, every
        self.qfl, self.tfl, self.tdg, self.vhalf = qfl, tfl, tdg, vhalf
        self.sfl2 = sfl2
        self.ask = ask; self.use = use
        self.stag = stag; self.touch = touch
        self.noout = noout
        self.Di = Di; self.rewarm = rewarm
        self.gl = gl
        self.fbk = fbk; self.fbfl = fbfl
        self.nearfl = nearfl; self.fs = fs
        self.forcefar = forcefar; pc0 = pcn = 2; early = True
        self.sfl, self.lfl, self.dg, self.pc0, self.pcn, self.catch, self.early = sfl, lfl, dg, pc0, pcn, catch, early
        self.o = []
        self.flags, self.stamps, self.padto, self.mapmode = flags, stamps, padto, mapmode
        self.D, self.DV, self.nb, self.D2, self.treeat = D, DV or D, nb, D2, treeat
        self.nohand, self.notree, self.noq, self.nopart, self.prio = nohand, notree, noq, nopart, prio
        self.oflags, self.warm, self.seg, self.frac, self.prof, self.f0, self.forcelate = oflags, warm, seg, frac, prof, f0, forcelate
        assert 14 <= D <= 31 and 14 <= self.DV <= 31 and 17 <= D2 <= 32
        self.uid = 0
    def A(self, s): self.o.append("  "+s)
    def L(self, s): self.o.append(s+":")
    def C(self, s): self.o.append("  ; "+s)
    vKR = (3, 4, 5, 6); vVR = 7; vTR = 8; vPR = 9; vPW = 10; vTag = 11
    mR = (12, 13); mC = (14, 15); lS = (16, 17); T0 = 18
    St = 24; SS = 32; AO = 160; PO = 176; QR = 176; AC = 208; LR = 216; PK = 224
    vL16 = 228; vDum = 229; vMask = 230; vLX = 232; vOut = 233; vFo = 234
    TS = 236
    fa = (244, 246); FM = 248
    mT = 252; lT = 254; ft = (56, 58)
    DM = 32; PBF = 36; fb = (44, 46); tw = 48; GM = 52
    @staticmethod
    def v4(r): return f"v[{r}:{r+3}]"
    @staticmethod
    def v2(r): return f"v[{r}:{r+1}]"
    def Q(self, qh, s): return self.v4(self.QR + (qh*4+s)*4)
    sX, sQ, sKT, sVT, sM, sO, sW = "s[24:27]", "s[32:35]", "s[36:39]", "s[40:43]", "s[44:47]", "s[48:51]", "s[52:55]"
    sVb = (28, 29)
    sPair, sRole, sWave, sSk, sRem, sA, sM0, sRd, sIdx, sP, sW4, sT = ["s%d" % i for i in range(60, 72)]
    sC, s4k, sF, sPw, sCnt, sSend, sRecv = "s72", "s73", "s74", "s75", "s79", "s30", "s31"
    nstamp = 0
    def stamp(self, idx):
        if self.stamps:
            r = 80 + 2*idx
            self.nstamp = max(self.nstamp, idx+1)
            self.A(f"s_memrealtime s[{r}:{r+1}]")
    def ringadv(self, r):
        self.A(f"s_add_u32 {r}, {r}, 0x4000")
        self.A(f"s_cmp_ge_u32 {r}, {RINGB}")
        self.A(f"s_cselect_b32 s77, {RINGB}, 0")
        self.A(f"s_sub_u32 {r}, {r}, s77")
    def xlane(self, a, b, op):
        A = self.A
        A("s_nop 1")
        A(f"v_permlane32_swap_b32 v{a}, v{b}")
        A(f"{op} v{a}, v{a}, v{b}")
        A(f"v_mov_b32 v{b}, v{a}")
        A("s_nop 1")
        A(f"v_permlane16_swap_b32 v{a}, v{b}")
        A(f"{op} v{a}, v{a}, v{b}")
        A(f"v_mov_b32 v{b}, v{a}")
        A("s_nop 1")
        A(f"v_permlane32_swap_b32 v{a}, v{b}")
    def srd(self, d, lo, hi, add, nbytes):
        A = self.A
        if add is None:
            A(f"s_mov_b32 s{d}, s{lo}"); A(f"s_mov_b32 s{d+1}, s{hi}")
        else:
            A(f"s_add_u32 s{d}, s{lo}, {add}"); A(f"s_addc_u32 s{d+1}, s{hi}, 0")
        A(f"s_mov_b32 s{d+2}, {nbytes}")
        A(f"s_mov_b32 s{d+3}, 0x20000")
    def rload(self, ins):
        if self.nopart: return
        if self.nearfl == 'sc1':
            self.A(ins+" sc1"); return
        self.uid += 1
        u = self.uid
        self.A(f"s_cmp_eq_u32 {self.sPw}, 1")
        self.A(f"s_cbranch_scc1 L_r{u}")
        self.A(ins+" sc1")
        self.A(f"s_branch L_rr{u}")
        self.L(f"L_r{u}")
        self.A(ins+" "+self.nearfl)
        self.L(f"L_rr{u}")
    def qk(self, dst=None):
        A = self.A
        dst = self.St if dst is None else dst
        for s in range(4):
            A(f"s_waitcnt lgkmcnt({3-s})")
            for qh in range(2):
                d = self.v4(dst+qh*4)
                A(f"v_mfma_f32_16x16x32_bf16 {d}, {self.v4(self.AO+s*4)}, {self.Q(qh,s)}, {'0' if s == 0 else d}")
    def pcalc(self):
        A = self.A
        A(f"s_set_gpr_idx_on {self.sIdx}, gpr_idx(SRC0)")
        for qh in range(2):
            for r in range(4):
                A(f"v_fma_f32 v{self.St+qh*4+r}, v{self.SS+qh*4+r}, {self.sC}, -v{self.mC[qh]}")
        A("s_set_gpr_idx_off")
        for r in range(4):
            for qh in range(2):
                A(f"v_exp_f32 v{self.St+qh*4+r}, v{self.St+qh*4+r}")
        A(f"s_add_u32 {self.sIdx}, {self.sIdx}, 8")
        for r in range(4):
            for qh in range(2):
                A(f"v_add_f32 v{self.lS[qh]}, v{self.lS[qh]}, v{self.St+qh*4+r}")
        for qh in range(2):
            for h in range(2):
                A(f"v_cvt_pk_bf16_f32 v{self.PK+qh*2+h}, v{self.St+qh*4+2*h}, v{self.St+qh*4+2*h+1}")
        A(f"ds_write2st64_b64 v{self.vPW}, {self.v2(self.PK)}, {self.v2(self.PK+2)} offset0:0 offset1:1")
        A(f"v_add_u32 v{self.vPW}, 0x1000, v{self.vPW}")

    def ldk(self, i):
        self.A(f"buffer_load_dwordx4 v{1+i%2}, {self.sX}, {self.sA} offen offset:{i*256} {self.flags} lds")
    def ldv(self, j):
        self.A(f"buffer_load_dwordx4 v{5+j//8}, {self.sX}, {self.sA} offen offset:{(j%8)*512} {self.flags} lds")
    def m0k(self, i): self.A(f"s_mov_b32 m0, {self.sM0}" if i == 0 else "s_addk_i32 m0, 0x300")
    def m0v(self, j): self.A(f"s_mov_b32 m0, {self.sM0}" if j == 0 else ("s_addk_i32 m0, 0x1200" if j == 8 else "s_addk_i32 m0, 0x200"))
    def pstamp(self):
        if self.prof:
            A = self.A
            A("s_waitcnt lgkmcnt(0)"); A("s_mov_b32 m0, s79"); A("v_writelane_b32 v12, s44, m0"); A("s_add_u32 s79, s79, 1"); A("s_memrealtime s[44:45]")
    def gated(self, D, m0, ld, first=None, fs=None):
        A, L = self.A, self.L
        fr = any(self.frac) or self.fbk
        if self.fbk:
            self.uid += 1
            A(f"s_bitcmp1_b32 {self.sRem}, 0")
            if self.every:
                u = self.uid
                A("v_add_u32 v21, -1, v15")
                A("v_add_u32 v15, 1, v15")
                A(f"s_cbranch_scc0 L_e{u}a")
                A("v_cmp_ge_u32 vcc, v14, v21")
                A(f"buffer_load_ubyte v14, v0, s[56:59], 0 offen {self.fbfl}")
                A(f"s_branch L_e{u}b")
                L(f"L_e{u}a")
                A("v_cmp_ge_u32 vcc, v20, v21")
                A(f"buffer_load_ubyte v20, v0, s[56:59], 0 offen {self.fbfl}")
                L(f"L_e{u}b")
                A("s_bcnt1_i32_b64 s2, vcc")
                A("buffer_store_byte v15, v16, s[56:59], s76 offen")
                A("s_cmp_ge_u32 s2, s78")
                A("s_cselect_b64 vcc, -1, 0")
                A(f"s_branch L_f{u}")
            A(f"s_cbranch_scc0 L_f{self.uid}")
            A("v_cmp_ge_u32 vcc, v14, v15")
            A("v_add_u32 v15, 1, v15")
            if self.gl:
                A("v_readlane_b32 s3, v14, 27")
                A("s_and_b32 s2, vcc_lo, 0x7ffffff")
                A("s_bcnt1_i32_b32 s2, s2")
                A("s_cmp_eq_u32 s3, 0"); A("s_cselect_b32 s3, 12, s3")
                A(f"s_mul_i32 s3, s3, {self.gl}"); A("s_lshl2_add_u32 s2, s2, s3")
                A("s_cmp_lg_u32 s76, 0")
                A(f"s_cbranch_scc1 L_fx{self.uid}")
                A("s_waitcnt lgkmcnt(0)")
                A("s_add_u32 s47, s46, 1")
                A("s_mov_b32 s3, 8")
                for x in range(8):
                    A(f"s_cmp_eq_u32 s{36+x}, s47"); A("s_addc_u32 s3, s3, 0")
                A(f"s_cmp_eq_u32 {self.sRem}, {2*N-1}"); A("s_cselect_b32 s3, 0, s3")
                A("v_mov_b32 v19, s3"); A("v_mov_b32 v17, s47")
                A("s_add_u32 s52, s52, 0x400"); A("s_addc_u32 s53, s53, 0"); A("s_add_u32 s54, s54, 0x400")
                for x in range(8):
                    A(f"s_load_dword s{36+x}, s[52:53], {x*128} glc")
                A("buffer_store_byte v19, v16, s[56:59], 0 offen offset:27")
                A("buffer_store_dword v17, v18, s[48:51], s54 offen sc1")
                L(f"L_fx{self.uid}")
            else:
                A("s_bcnt1_i32_b64 s2, vcc")
            if self.clean and first is None:
                A(f"s_cmp_lg_u32 {self.sRem}, 1")
                A(f"s_cbranch_scc1 L_c{self.uid}")
                if not self.cw:
                    A("s_cmp_lg_u32 s76, 0")
                    A(f"s_cbranch_scc1 L_d{self.uid}")
                    A("buffer_store_byte v15, v16, s[56:59], s76 offen sc1")
                A(f"s_branch L_d{self.uid}")
                L(f"L_c{self.uid}")
            A(f"buffer_load_ubyte v14, v0, s[56:59], 0 offen {self.fbfl}")
            A("buffer_store_byte v15, v16, s[56:59], s76 offen")
            L(f"L_d{self.uid}")
            A("s_cmp_ge_u32 s2, s78")
            A("s_cselect_b64 vcc, -1, 0")
            L(f"L_f{self.uid}")
        elif fr:
            A(f"s_bitcmp1_b32 s78, {self.sRem}"); A("s_cselect_b64 vcc, -1, 0")
        Dh = D + ((fs or self.fs) if fr else 0)
        assert Dh <= 32
        for i in range(16):
            m0(i)
            if fr:
                self.uid += 1
                A(f"s_waitcnt vmcnt({Dh-1})")
                A(f"s_cbranch_vccnz L_g{self.uid}")
            A(f"s_waitcnt vmcnt({D-1})")
            if fr: L(f"L_g{self.uid}")
            ld(i)
            if i == Dh-17:
                if first:
                    A(f"s_cmp_eq_u32 {self.sRem}, {2*N-1}")
                    A(f"s_cbranch_scc1 {first}")
                A("s_barrier")
                if first: L(first)
        self.pstamp()
    def loader(self):
        A, L, C = self.A, self.L, self.C
        L("L_loader")
        C("K source lane offsets: g*4096 + (slot ^ 2g ^ 8*(i%2))*16 ; row i through the immediate offset")
        A("v_lshlrev_b32 v1, 12, v9"); A("v_lshl_add_u32 v1, v10, 4, v1")
        A("v_xor_b32 v2, 0x80, v1")
        if self.prio: A(f"s_setprio {self.prio}")
        A(f"s_mov_b32 {self.sA}, 0"); A("s_mov_b32 m0, 0")
        A("s_mov_b32 s26, 0x40000"); A("s_mov_b32 s27, 0x20000")
        A("s_waitcnt lgkmcnt(0)")
        A("s_add_u32 s24, s6, s22"); A("s_addc_u32 s25, s7, 0")
        fill = [f"s_lshl_b32 s3, {self.sPair}, 13", "s_add_u32 s32, s4, s3", "s_addc_u32 s33, s5, 0", "s_mov_b32 s34, 8192", "s_mov_b32 s35, 0x20000",
                "v_lshlrev_b32 v3, 8, v9", "v_lshl_add_u32 v3, v10, 4, v3", "v_xor_b32 v4, 0x80, v3", f"s_movk_i32 {self.s4k}, 0x1000",
                f"s_mov_b32 {self.sM0}, 0", f"s_mov_b32 {self.sRem}, {2*N-1}"]
        for i in range(16):
            self.ldk(i)
            if i < 15:
                A("s_addk_i32 m0, 0x300")
                if fill:
                    x = fill.pop(0); A(x)
                    if x.startswith("s_add_u32"): A(fill.pop(0))
                else: A("s_nop 0")
        if self.prof: A("s_memrealtime s[44:45]"); A("s_mov_b32 s79, 0"); A("s_mov_b32 s23, s2")
        if not self.noq:
            for h in range(2):
                A(f"s_mov_b32 m0, {QS+h*4096}"); A("s_nop 0")
                for x in range(4):
                    A(f"buffer_load_dwordx4 v{3+x%2}, {self.sQ}, {self.s4k if h else '0'} offen offset:{x*1024} {self.qfl} lds")
        if self.Di:
            A(f"s_movk_i32 {self.sA}, 0x4000"); A(f"s_mov_b32 {self.sM0}, {self.sA}"); A(f"s_mov_b32 {self.sRem}, {2*N-2}"); A("s_mov_b64 vcc, 0")
            ni = min(16, max(0, self.Di-24))
            for i in range(ni):
                self.m0k(i); A("s_nop 0"); self.ldk(i)
        C("V source lane offsets: u=l/8: (u%4)*4096 + (u/4)*256 + ((l%8) ^ (u&6))*16")
        A("v_lshrrev_b32 v7, 3, v0"); A("v_and_b32 v8, 6, v7"); A("v_xor_b32 v8, v8, v0"); A("v_and_b32 v8, 7, v8"); A("v_lshlrev_b32 v8, 4, v8")
        A("v_and_b32 v5, 3, v7"); A("v_lshl_add_u32 v5, v5, 12, v8"); A("v_lshrrev_b32 v7, 2, v7"); A("v_lshl_add_u32 v5, v7, 8, v5")
        A("v_add_u32 v6, 0x4000, v5")
        if self.fbk:
            A("s_lshr_b32 s76, s2, 3"); A("s_and_b32 s3, s2, 7"); A("s_lshl_b32 s3, s3, 5")
            self.srd(56, 18, 19, "s3", 32)
            A("v_mov_b32 v14, 0"); A(f"v_mov_b32 v15, {2 if self.every else 1}"); A("v_mov_b32 v20, 0"); A("v_lshlrev_b32 v16, 5, v0")
            pk = sum((t & 31) << (5*x) for x, t in enumerate(self.fbk))
            A("s_getreg_b32 s2, hwreg(HW_REG_XCC_ID)"); A("s_and_b32 s2, s2, 7"); A("s_mul_i32 s2, s2, 5")
            A(f"s_mov_b32 s30, 0x{pk & 0xffffffff:08x}"); A(f"s_mov_b32 s31, 0x{pk >> 32:08x}")
            A("s_lshr_b64 s[30:31], s[30:31], s2"); A("s_and_b32 s78, s30, 31")
            if self.gl:
                self.srd(48, 20, 21, "0x400000", 0x8000)
                A("s_mov_b32 s52, s48"); A("s_mov_b32 s53, s49"); A("s_lshl_b32 s54, s3, 2")
                A("s_load_dword s46, s[52:53], 0")
                A("v_lshlrev_b32 v18, 15, v0")
                A(f"s_lshl2_add_u32 s78, s78, {self.gl*12}")
                A("s_cmp_ge_u32 s76, 27"); A("s_cselect_b32 s76, 64, s76")
                for x in range(8): A(f"s_mov_b32 s{36+x}, 0")
        elif any(self.frac):
            A("s_getreg_b32 s2, hwreg(HW_REG_XCC_ID)"); A("s_and_b32 s2, s2, 7"); A("s_mov_b32 s78, 0")
            for x in range(8):
                m = 0
                for b in range(32):
                    if int((b+1)*self.frac[x]+1e-9) != int(b*self.frac[x]+1e-9): m |= 1 << b
                if m:
                    A(f"s_cmp_eq_u32 s2, {x}"); A(f"s_cselect_b32 s78, 0x{m:08x}, s78")
        if self.Di:
            for i in range(ni, 16):
                self.m0k(i); A(f"s_waitcnt vmcnt({self.Di-1})"); self.ldk(i)
            self.pstamp()
        L("L_lk")
        A(f"s_add_u32 {self.sA}, {self.sA}, 0x4000")
        self.ringadv(self.sM0)
        self.gated(self.D, self.m0k, self.ldk, first=None if self.Di else "L_lkb")
        A(f"s_sub_u32 {self.sRem}, {self.sRem}, 1")
        A(f"s_cmp_lg_u32 {self.sRem}, {N}")
        A("s_cbranch_scc1 L_lk")
        self.o.append("@HOPON")
        A("s_add_u32 s24, s8, s22"); A("s_addc_u32 s25, s9, 0")
        A(f"s_lshl_b32 {self.sT}, {self.sRole}, 7")
        A(f"s_xor_b32 {self.sA}, {self.sT}, 0x80")
        L("L_lv")
        self.ringadv(self.sM0)
        self.gated(self.DV, self.m0v, self.ldv)
        A(f"s_add_u32 {self.sA}, {self.sA}, 0x8000")
        A(f"s_sub_u32 {self.sRem}, {self.sRem}, 1")
        A(f"s_cmp_eq_u32 {self.sRem}, {N//2}")
        A(f"s_cselect_b32 {self.sA}, {self.sT}, {self.sA}")
        A(f"s_cmp_lg_u32 {self.sRem}, {self.nb or self.nt2}")
        A("s_cbranch_scc1 L_lv")
        if self.nt2:
            L("L_lw")
            self.ringadv(self.sM0)
            self.gated(self.D3 or self.DV, self.m0v, self.ldv, fs=self.fs2)
            A(f"s_add_u32 {self.sA}, {self.sA}, 0x8000")
            A(f"s_sub_u32 {self.sRem}, {self.sRem}, 1")
            A(f"s_cmp_lg_u32 {self.sRem}, 0")
            A("s_cbranch_scc1 L_lw")
        sig = -2; nb = self.nb
        for st in range(nb):
            self.ringadv(self.sM0)
            for i in range(16):
                j = st*16+i
                self.m0v(i)
                A(f"s_waitcnt vmcnt({self.D2-1})")
                self.ldv(i)
                if j - self.D2 == sig*16+15:
                    A("s_barrier"); sig += 1
            A(f"s_add_u32 {self.sA}, {self.sA}, 0x8000")
            self.pstamp()
        while sig < nb:
            A(f"s_waitcnt vmcnt({(nb-1-sig)*16})")
            self.pstamp()
            A("s_barrier"); sig += 1
        if self.gl:
            A(f"s_or_b32 s2, {self.sPair}, {self.sRole}"); A("s_cbranch_scc1 L_ne")
            A("buffer_store_dword v17, v18, s[48:51], 0 offen")
            L("L_ne")
        if self.prof:
            self.pstamp()
            A("v_writelane_b32 v12, s80, 60"); A(f"v_writelane_b32 v12, {self.sRole}, 61"); A("s_getreg_b32 s3, hwreg(HW_REG_XCC_ID)"); A("v_writelane_b32 v12, s3, 62")
            A("v_writelane_b32 v12, s23, 63")
            A("s_getreg_b32 s3, hwreg(HW_REG_HW_ID)"); A("v_writelane_b32 v12, s3, 59")
            self.srd(52, 20, 21, None, 0x1000000)
            A(f"s_lshl_b32 s2, {self.sPair}, 1"); A(f"s_add_u32 s2, s2, {self.sRole}"); A("s_lshl_b32 s2, s2, 8"); A("s_add_u32 s2, s2, 0x810000")
            A("v_lshlrev_b32 v13, 2, v0")
            A(f"buffer_store_dword v12, v13, {self.sW}, s2 offen")
        A("s_endpgm")
        self.o.append("@HOPOFF")

    def compute(self):
        A, L, C = self.A, self.L, self.C
        T0, LR, TS, St = self.T0, self.LR, self.TS, self.St
        LT = self.lS[0]
        fa, fb, tw, FM, GM, DM, PBF = self.fa, self.fb, self.tw, self.FM, self.GM, self.DM, self.PBF
        C("---- K phase")
        L("L_k")
        self.o.append("@WARMCALL")
        A("s_barrier")
        A(f"s_cmp_lg_u32 {self.sIdx}, 0")
        A("s_cbranch_scc1 L_k1")
        self.stamp(1)
        for qh in range(2):
            for s in range(4):
                A(f"ds_read_b128 {self.Q(qh,s)}, v{T0+s} offset:{qh*4096}")
        L("L_k1")
        for s in range(4):
            A(f"v_add_u32 v{T0+s}, {self.sRd}, v{self.vKR[s]}")
            A(f"ds_read_b128 {self.v4(self.AO+s*4)}, v{T0+s}")
        self.ringadv(self.sRd)
        self.qk()
        A("s_nop 7")
        for h in range(2):
            for qh in range(2):
                A(f"v_max3_f32 v{self.mR[qh]}, v{self.mR[qh]}, v{St+qh*4+2*h}, v{St+qh*4+2*h+1}")
        A(f"s_set_gpr_idx_on {self.sIdx}, gpr_idx(DST)")
        for k in range(8):
            A(f"v_mov_b32 v{self.SS+k}, v{St+k}")
        A("s_set_gpr_idx_off")
        A(f"s_add_u32 {self.sIdx}, {self.sIdx}, 8")
        A(f"s_sub_u32 {self.sRem}, {self.sRem}, 1")
        if self.stag:
            A(f"s_cmp_eq_u32 {self.sRem}, {self.sSk}")
            A("s_cbranch_scc1 L_tl")
        if self.pre == 1:
            A(f"s_cmp_lg_u32 {self.sRem}, {self.sSk}")
            A("s_cbranch_scc1 L_k3")
            A(f"buffer_load_dwordx4 {self.v4(self.PK)}, v{self.vFo}, {self.sO if self.mbo else self.sW}, {self.sRecv} offen {self.pfl}")
            L("L_k3")
        A(f"s_cmp_gt_u32 {self.sRem}, 7")
        A("s_cbranch_scc1 L_k")
        for rem, lab in ((7, "L_e0"), (5, "L_e1"), (4, "L_e2"), (3, "L_e3"), (2, "L_e4")):
            A(f"s_cmp_eq_u32 {self.sRem}, {rem}")
            A(f"s_cbranch_scc1 {lab}")
        A(f"s_cmp_lg_u32 {self.sRem}, 0")
        A("s_cbranch_scc1 L_k")
        C("---- phase change")
        self.stamp(2)
        self.xlane(self.mR[0], self.mR[1], "v_max_f32")
        A(f"s_lshr_b32 s2, {self.sW4}, 3")
        A(f"v_add_u32 v{T0}, s2, v{self.vLX}")
        A(f"ds_write_b64 v{T0}, {self.v2(self.mR[0])}")
        if self.nobar:
            A(f"v_mov_b32 v{T0+3}, {TK}"); A(f"v_mov_b32 v{T0+4}, 0"); A(f"ds_write_b32 v{T0+3}, v{T0+4}")
        A(f"s_sub_u32 {self.sRd}, {self.sRd}, {self.sW4}")
        A(f"s_mov_b32 {self.sRem}, {N}")
        A(f"s_mov_b32 {self.sIdx}, 0")
        A(f"s_mov_b32 {self.sCnt}, {self.pc0}"); A(f"s_mov_b32 {self.sF}, 0")
        for r in range(0, 8, 2):
            A(f"v_mov_b64 {self.v2(self.AC+r)}, 0")
        A("s_waitcnt lgkmcnt(0)")
        A("s_barrier")
        for k in range(2):
            A(f"ds_read2st64_b64 {self.v4(LR+4*k)}, v{self.vLX} offset0:{2*k} offset1:{2*k+1}")
        A("s_waitcnt lgkmcnt(0)")
        for qh in range(2):
            A(f"v_max3_f32 v{self.mR[qh]}, v{LR+qh}, v{LR+2+qh}, v{LR+4+qh}")
            A(f"v_max_f32 v{self.mR[qh]}, v{self.mR[qh]}, v{LR+6+qh}")
            A(f"v_mul_f32 v{self.mC[qh]}, {self.sC}, v{self.mR[qh]}")
        L("L_pc")
        self.pcalc()
        A(f"s_sub_u32 {self.sCnt}, {self.sCnt}, 1")
        A(f"s_cmp_lg_u32 {self.sCnt}, 0")
        A("s_cbranch_scc1 L_pc")
        A(f"s_mov_b32 {self.sCnt}, {self.pcn}")
        A(f"s_cmp_lg_u32 {self.sIdx}, {8*N}")
        A("s_cbranch_scc1 L_vb")
        C("all P done: publish this wave's l")
        self.xlane(self.lS[0], self.lS[1], "v_add_f32")
        A(f"s_lshr_b32 s2, {self.sW4}, 3")
        A(f"v_add_u32 v{T0}, s2, v{self.vLX}")
        A(f"ds_write_b64 v{T0}, {self.v2(self.lS[0])} offset:2048")
        L("L_vb")
        if self.pre == 2:
            A(f"s_cmp_lg_u32 {self.sRem}, s22")
            A("s_cbranch_scc1 L_vb3")
            A(f"buffer_load_dwordx4 v[36:39], v{self.vFo}, {self.sO if self.mbo else self.sW}, {self.sRecv} offen {self.pfl}")
            L("L_vb3")
        A(f"s_mov_b32 {self.sSk}, 1")
        A("s_waitcnt lgkmcnt(0)")
        A("s_barrier")
        L("L_v")
        A(f"v_add_u32 v{T0+1}, {self.sP}, v{self.vPR}")
        A(f"v_add_u32 v{T0}, {self.sRd}, v{self.vVR}")
        for ks in range(4):
            for qh in range(2):
                A(f"ds_read2st64_b64 {self.v4(self.PO+(ks*2+qh)*4)}, v{T0+1} offset0:{ks*4+qh} offset1:{ks*4+2+qh}")
        self.ringadv(self.sRd)
        A(f"s_add_u32 {self.sP}, {self.sP}, 0x2000"); A(f"s_and_b32 {self.sP}, {self.sP}, 0xffff")
        A(f"s_sub_u32 {self.sRem}, {self.sRem}, 1")
        A(f"s_cmp_lg_u32 {self.sSk}, 0")
        A(f"s_mov_b32 {self.sSk}, 0")
        A(f"s_waitcnt lgkmcnt({6 if self.nobar else 7})")
        A("s_cbranch_scc1 L_v1")
        A("s_barrier")
        self.stamp(4)
        L("L_v1")
        if self.nobar: A(f"ds_read_b32 v{T0+2}, v{T0+3}")
        for ks in range(4):
            for b in range(2):
                A(f"ds_read_b64_tr_b16 {self.v2(self.AO+ks*4+2*b)}, v{T0} offset:{(ks*2+b)*2048}")
        A(f"s_cmp_eq_u32 {self.sRem}, 0")
        for ks in range(4):
            A(f"s_waitcnt lgkmcnt({6-2*ks})")
            for qh in range(2):
                a = self.v4(self.AC+4*qh)
                A(f"v_mfma_f32_16x16x32_bf16 {a}, {self.v4(self.AO+ks*4)}, {self.v4(self.PO+(ks*2+qh)*4)}, {a}")
        A("s_cbranch_scc1 L_done")
        A(f"s_cmp_le_u32 {self.sRem}, {self.use}")
        A("s_cbranch_scc1 L_sm")
        A(f"s_cmp_ge_u32 {self.sRem}, 9")
        A("s_cbranch_scc1 L_pc")
        A(f"s_cmp_eq_u32 {self.sRem}, 8")
        A("s_cbranch_scc1 L_sw")
        if self.split:
            assert self.catch != 7
            A(f"s_cmp_eq_u32 {self.sRem}, 7")
            A("s_cbranch_scc1 L_sw2")
        A(f"s_cmp_eq_u32 {self.sRem}, {self.ask}")
        A("s_cbranch_scc1 L_ask")
        assert self.catch not in (8, self.ask) and self.use < self.catch < 8 and self.use < self.ask < 8
        A(f"s_cmp_eq_u32 {self.sRem}, {self.catch}")
        A(f"s_cselect_b32 {self.sSk}, 1, 0")
        A("s_branch L_v")
        MS = 32
        MR = 60
        L("L_sw")
        C("end of the partner's column half: l total; park the partial where the partner's output goes, and {w, check}")
        C("in the workspace; restart the accumulators. Partner's hello equal to mine: same die, may stay in its L2")
        for k in range(2):
            A(f"ds_read2st64_b64 {self.v4(LR+4*k)}, v{self.vLX} offset0:{4+2*k} offset1:{5+2*k}")
        A("s_waitcnt lgkmcnt(0)")
        A(f"v_pk_add_f32 {self.v2(LR)}, {self.v2(LR)}, {self.v2(LR+2)}")
        A(f"v_pk_add_f32 {self.v2(LR+4)}, {self.v2(LR+4)}, {self.v2(LR+6)}")
        A(f"v_pk_add_f32 {self.v2(LT)}, {self.v2(LR)}, {self.v2(LR+4)}")
        for qh in range(2):
            A(f"v_rcp_f32 v{fa[qh]}, v{LT+qh}")
        for qh in range(2):
            A(f"v_log_f32 v{LR+qh}, v{LT+qh}")
        for p in range(4):
            a = self.AC+2*p
            A(f"v_pk_mul_f32 {self.v2(a)}, {self.v2(a)}, {self.v2(fa[p//2])} op_sel_hi:[1,0]")
        for p in range(4):
            a = self.AC+2*p
            A(f"v_cvt_pk_bf16_f32 v{MS+p}, v{a}, v{a+1}")
        for r in range(0, 8, 2):
            A(f"v_mov_b64 {self.v2(self.AC+r)}, 0")
        if self.split:
            A("s_branch L_v")
            L("L_sw2")
        A("s_waitcnt vmcnt(0)")
        A(f"v_cmp_eq_u64 vcc, {self.v2(FM)}, {self.v2(FM+2)}")
        A(f"v_pk_add_f32 {self.v2(LR)}, {self.v2(LR)}, {self.v2(self.mC[0])}")
        A("s_mov_b32 s2, 0xffff0000"); A("s_mov_b32 s3, 0xffff0000")
        A("s_cmp_eq_u64 vcc, -1")
        A(f"s_cselect_b32 {self.sPw}, {0 if self.forcefar else 1}, 0")
        A(f"v_cndmask_b32 v{MS+4}, v{LR}, v{LR+1}, s[2:3]")
        def chk(d, m):
            A(f"v_add3_u32 v{d}, v{m}, v{m+1}, v{m+2}")
            A(f"v_add3_u32 v{d}, v{m+3}, v{m+4}, v{d}")
            for r in (8, 4, 2, 1):
                A("s_nop 1")
                A(f"v_add_u32_dpp v{d}, v{d}, v{d} row_ror:{r} row_mask:0xf bank_mask:0xf")
            A(f"v_readfirstlane_b32 s2, v{self.vTag}")
            for ln in (0, 16, 32, 48):
                A(f"v_readlane_b32 s3, v{d}, {ln}")
                A("s_add_u32 s2, s2, s3")
        for p in range(4): A(f"v_xor_b32 v{MS+p}, v{MS+p}, v235")
        chk(MS+5, MS)
        A(f"v_writelane_b32 v{MS+4}, s2, 32")
        nxt = "L_v"
        if self.forcelate:
            A("s_branch L_v")
            L("L_flag2")
            nxt = "L_done2"
        A(f"s_cmp_eq_u32 {self.sPw}, 1")
        A("s_cbranch_scc1 L_sw1")
        for fl, lab in (("sc1", "L_sw1"), ("", None)):
            if not self.nopart:
                A(f"buffer_store_dwordx4 {self.v4(MS)}, v{self.vFo}, {self.sO if self.mbo else self.sW}, {self.sSend} offen {fl}")
                A(f"buffer_store_dword v{MS+4}, v{self.vL16}, {self.sW}, s28 offen {fl}")
            A(f"s_branch {nxt}")
            if lab: L(lab)
        C("take the partner's message (asked for earlier); ask again while its check word does not match")
        L("L_sm")
        if self.stamps:
            A(f"s_cmp_lg_u32 {self.sRem}, 1"); A("s_cbranch_scc1 L_sm0"); self.stamp(3); L("L_sm0")
        A(f"s_cmp_eq_u32 {self.sF}, 3")
        A("s_cbranch_scc1 L_v")
        A("s_waitcnt vmcnt(0)")
        chk(tw, MR)
        A(f"v_readfirstlane_b32 s3, v{MR+5}")
        A("s_cmp_eq_u32 s2, s3")
        if self.nohand: A("s_branch L_hdr")
        A("s_cbranch_scc1 L_hdr")
        A("s_sub_u32 s76, s76, 1")
        A("s_cbranch_scc1 L_hdr")
        L("L_ask")
        if not self.nopart:
            A(f"buffer_load_dwordx4 {self.v4(MR)}, v{self.vFo}, {self.sO if self.mbo else self.sW}, {self.sRecv} offen sc1")
            A(f"buffer_load_dword v{MR+4}, v{self.vDum}, {self.sW}, s29 offen sc1")
            A(f"buffer_load_dword v{MR+5}, off, {self.sW}, {self.s4k} sc1")
        A("s_branch L_smx")
        L("L_hdr")
        if self.clean and self.cw and self.fbk:
            C("one wave per progress group writes its line through now, so that it is not left for the end of the kernel")
            A(f"buffer_store_byte v0, v{self.vFo}, s[56:59], 0 offen sc1")
        ft, mT, lT = self.ft, self.mT, self.lT
        PBF = 40; fb = (52, 54)
        A(f"v_mov_b32 v{MR+5}, v{MR+4}")
        for p in range(4): A(f"v_xor_b32 v{MR+p}, v{MR+p}, v235")
        A(f"v_permlane16_swap_b32 v{MR+4}, v{MR+5}")
        for qh in range(2):
            A(f"v_max3_f32 v{tw+qh}, v{self.mC[qh]}, v{MR+4+qh}, v{mT+qh}")
        for qh in range(2):
            A(f"v_sub_f32 v{fa[qh]}, v{self.mC[qh]}, v{tw+qh}")
            A(f"v_sub_f32 v{fb[qh]}, v{MR+4+qh}, v{tw+qh}")
            A(f"v_sub_f32 v{ft[qh]}, v{mT+qh}, v{tw+qh}")
        for qh in range(2):
            A(f"v_exp_f32 v{fa[qh]}, v{fa[qh]}"); A(f"v_exp_f32 v{fb[qh]}, v{fb[qh]}"); A(f"v_exp_f32 v{ft[qh]}, v{ft[qh]}")
        A(f"s_mov_b32 {self.sF}, 3")
        for qh in range(2):
            A(f"v_fma_f32 v{tw+qh}, v{LT+qh}, v{fa[qh]}, v{fb[qh]}")
        for qh in range(2):
            A(f"v_fmac_f32 v{tw+qh}, v{lT+qh}, v{ft[qh]}")
        for qh in range(2):
            A(f"v_rcp_f32 v{tw+qh}, v{tw+qh}")
        for p in range(4):
            r = MR+p
            A(f"v_lshlrev_b32 v{PBF+2*p}, 16, v{r}"); A(f"v_and_b32 v{PBF+2*p+1}, 0xffff0000, v{r}")
        for qh in range(2):
            A(f"v_mul_f32 v{fa[qh]}, v{fa[qh]}, v{tw+qh}"); A(f"v_mul_f32 v{fb[qh]}, v{fb[qh]}, v{tw+qh}"); A(f"v_mul_f32 v{ft[qh]}, v{ft[qh]}, v{tw+qh}")
        for p in range(4):
            A(f"v_pk_mul_f32 {self.v2(TS+2*p)}, {self.v2(TS+2*p)}, {self.v2(ft[p//2])} op_sel_hi:[1,0]")
        for p in range(4):
            A(f"v_pk_fma_f32 {self.v2(PBF+2*p)}, {self.v2(PBF+2*p)}, {self.v2(fb[p//2])}, {self.v2(TS+2*p)} op_sel_hi:[1,0,1]")
        if self.nobar:
            C("count the waves that are done with the mailbox before the last barrier")
            A(f"s_cmp_eq_u32 {self.sRem}, 0")
            A("s_cbranch_scc1 L_smx")
            A("s_mov_b64 exec, 1")
            A(f"v_mov_b32 v{T0+4}, 1")
            A(f"ds_add_u32 v{T0+3}, v{T0+4}")
            A("s_mov_b64 exec, -1")
        L("L_smx")
        A(f"s_cmp_lg_u32 {self.sRem}, 0")
        A("s_cbranch_scc1 L_v")
        if self.forcelate: A("s_branch L_done2")
        L("L_done")
        self.stamp(5)
        if self.forcelate:
            A("s_branch L_flag2")
            L("L_done2")
        A(f"s_cmp_lg_u32 {self.sF}, 3")
        A("s_cbranch_scc1 L_sm")
        if self.mbo and not self.ac:
            C("every wave has taken its message out of the lines the output goes to")
            if self.nobar:
                A(f"v_readfirstlane_b32 s2, v{T0+2}")
                A("s_cmp_eq_u32 s2, 4")
                A("s_cbranch_scc1 L_go")
                A("s_barrier")
                L("L_go")
                A("s_nop 1")
            else:
                A("s_barrier"); A("s_nop 3")
        else: A("s_nop 4")
        self.stamp(6)
        for p in range(4):
            a = self.AC+2*p
            A(f"v_pk_fma_f32 {self.v2(a)}, {self.v2(a)}, {self.v2(fa[p//2])}, {self.v2(PBF+2*p)} op_sel_hi:[1,0,1]")
        OUT = self.AO
        for p in range(4):
            a = self.AC+2*p
            A(f"v_cvt_pk_bf16_f32 v{OUT+p}, v{a}, v{a+1}")
        if self.ac:
            C("regroup through LDS so that every wave writes whole lines, written through")
            A(f"ds_write2st64_b64 v{self.vOut}, {self.v2(OUT)}, {self.v2(OUT+2)} offset0:0 offset1:4")
            A(f"s_cmp_eq_u32 {self.sWave}, 0")
            A("s_waitcnt lgkmcnt(0)")
            A("s_barrier")
            A(f"ds_read_b128 {self.v4(OUT)}, v2")
            A("s_waitcnt lgkmcnt(0)")
            if not self.noout: A(f"buffer_store_dwordx4 {self.v4(OUT)}, v{self.vFo}, {self.sO}, {self.sRecv} offen {self.acfl}")
            A("s_cbranch_scc0 L_fin")
            C("leave nothing dirty in L2: write through the two header lines just read; role 0 also moves the epoch on")
            A(f"buffer_store_dword v{self.vTag}, v1, {self.sW}, 0 offen sc1")
        else:
            A(f"s_or_b32 s2, {self.sRole}, {self.sWave}")
            A("s_cmp_eq_u32 s2, 0")
            for h in range(2):
                A(f"v_permlane16_swap_b32 v{OUT+h}, v{OUT+2+h}")
            if not self.noout: A(f"buffer_store_dwordx4 {self.v4(OUT)}, v{self.vOut}, {self.sO}, 0 offen {self.oflags}")
            A("s_cbranch_scc0 L_fin")
            A("s_mov_b64 exec, 1")
            if not self.nosmall: A(f"buffer_store_dword v{self.vTag}, off, {self.sW}, 0 offset:768")
            A("s_mov_b64 exec, -1")
    def tl(self):
        A = self.A
        A(f"buffer_load_dword v{self.vTag}, off, {self.sW}, 0 offset:768")
        if 'W' in self.tdg: A(f"buffer_load_dword v23, off, {self.sO}, 0")
        if not self.notree:
            A(f"s_lshl_b32 s3, {self.sWave}, 10")
            A(f"s_add_u32 m0, s3, {TK}")
            A("s_nop 0")
            if 'K' in self.tdg: A(f"buffer_load_dwordx4 v1, {self.sKT}, s3 offen {self.tfl} lds")
            A(f"s_add_u32 m0, s3, {TV}")
            A("s_nop 0")
            if 'V' in self.tdg: A(f"buffer_load_dwordx4 v1, {self.sVT}, s3 offen {self.tfl} lds")
            if 'M' in self.tdg: A(f"buffer_load_dwordx2 {self.v2(self.vMask)}, v2, {self.sM}, 0 offen")
    def tree(self):
        A, L, C = self.A, self.L, self.C
        T0, TS, St, LR, FM = self.T0, self.TS, self.St, self.LR, self.FM
        nt = not self.notree and 'E' in self.tdg
        if self.stag:
            L("L_tl"); self.tl(); A("s_branch L_k")
        L("L_e0")
        C("epoch and tree data landed: say hello {die id, tag} with a plain store")
        A("s_waitcnt vmcnt(0)")
        A(f"v_add_u32 v{self.vTag}, 1, v{self.vTag}")
        A(f"v_lshl_add_u32 v235, v0, 7, v{self.vTag}"); A("s_mov_b32 s2, 0x9e3779b1"); A("v_mul_lo_u32 v235, v235, s2")
        if self.ac:
            C("staging write: q*128 + ((2w+g/2)^(q&7))*16 + (g&1)*8 ; read: row=8w+l/8: row*128 + ((l%8)^(row&7))*16")
            o = self.vOut
            A("v_lshrrev_b32 v1, 5, v0"); A(f"s_lshl_b32 s2, {self.sWave}, 1"); A("v_add_u32 v1, s2, v1"); A("v_xor_b32 v1, v1, v0"); A("v_and_b32 v1, 7, v1")
            A(f"v_and_b32 v{o}, 15, v0"); A(f"v_lshlrev_b32 v{o}, 7, v{o}"); A(f"v_lshl_add_u32 v{o}, v1, 4, v{o}")
            A("v_bfe_u32 v1, v0, 4, 1"); A(f"v_lshl_add_u32 v{o}, v1, 3, v{o}"); A(f"v_add_u32 v{o}, {TK}, v{o}")
            A("v_lshrrev_b32 v1, 3, v0"); A("v_xor_b32 v2, v1, v0"); A("v_and_b32 v2, 7, v2"); A("v_lshlrev_b32 v2, 4, v2"); A("v_lshl_add_u32 v2, v1, 7, v2")
            A(f"s_lshl_b32 s2, {self.sWave}, 10"); A(f"s_add_u32 s2, s2, {TK}"); A("v_add_u32 v2, s2, v2")
            C("closing stores: lane 0,1 the received header lines, lane 2 the epoch (role 0), the rest out of range")
            A("v_mov_b32 v1, 0x10000"); A("s_add_u32 s2, s29, 0x80"); A(f"s_cmp_eq_u32 {self.sRole}, 0"); A("s_mov_b32 s3, 0x10000"); A("s_cselect_b32 s3, 0x300, s3")
            A("v_writelane_b32 v1, s29, 0"); A("v_writelane_b32 v1, s2, 1"); A("v_writelane_b32 v1, s3, 2")
        A(f"s_getreg_b32 {self.sPw}, hwreg(HW_REG_XCC_ID)")
        A(f"v_mov_b32 v{FM}, {self.sPw}"); A(f"v_mov_b32 v{FM+1}, v{self.vTag}")
        A(f"s_cmp_lg_u32 {self.sWave}, 0")
        A("s_cbranch_scc1 L_k")
        A("s_mov_b64 exec, 1")
        if not self.nosmall: A(f"buffer_store_dwordx2 {self.v2(FM)}, off, {self.sW}, s28 offset:256 {'sc1' if self.ac else ''}")
        A("s_mov_b64 exec, -1")
        A("s_branch L_k")
        L("L_e1")
        if nt:
            for s in range(4):
                A(f"v_add_u32 v{T0+s}, {TK}, v{self.vKR[s]}")
                A(f"ds_read_b128 {self.v4(self.AO+s*4)}, v{T0+s}")
            self.qk(TS)
        A("s_branch L_k")
        L("L_e2")
        if nt:
            big = -1.0e9 * math.sqrt(128.0)
            B0 = LR
            A(f"v_lshlrev_b32 v{B0}, 16, v{self.vMask}"); A(f"v_and_b32 v{B0+1}, 0xffff0000, v{self.vMask}")
            A(f"v_lshlrev_b32 v{B0+2}, 16, v{self.vMask+1}"); A(f"v_and_b32 v{B0+3}, 0xffff0000, v{self.vMask+1}")
            for r in range(4): A(f"v_sub_f32 v{B0+r}, 1.0, v{B0+r}")
            for r in range(4): A(f"v_mul_f32 v{B0+r}, 0x{f2u(big):08x}, v{B0+r}")
            for qh in range(2):
                for r in range(4):
                    A(f"v_add_f32 v{TS+qh*4+r}, v{TS+qh*4+r}, v{B0+r}")
                A(f"v_max3_f32 v{self.mT+qh}, v{TS+qh*4}, v{TS+qh*4+1}, v{TS+qh*4+2}")
                A(f"v_max_f32 v{self.mT+qh}, v{self.mT+qh}, v{TS+qh*4+3}")
            self.xlane(self.mT, self.mT+1, "v_max_f32")
        A("s_branch L_k")
        L("L_e3")
        if nt:
            for qh in range(2):
                A(f"v_mul_f32 v{self.mT+qh}, {self.sC}, v{self.mT+qh}")
            for qh in range(2):
                for r in range(4):
                    A(f"v_fma_f32 v{TS+qh*4+r}, v{TS+qh*4+r}, {self.sC}, -v{self.mT+qh}")
            for r in range(4):
                for qh in range(2):
                    A(f"v_exp_f32 v{TS+qh*4+r}, v{TS+qh*4+r}")
            A("s_nop 0")
            for qh in range(2):
                A(f"v_add_f32 v{self.lT+qh}, v{TS+qh*4}, v{TS+qh*4+1}")
                A(f"v_add_f32 v{T0+qh}, v{TS+qh*4+2}, v{TS+qh*4+3}")
            A(f"v_pk_add_f32 {self.v2(self.lT)}, {self.v2(self.lT)}, {self.v2(T0)}")
            for qh in range(2):
                for h in range(2):
                    A(f"v_cvt_pk_bf16_f32 v{LR+2+qh*2+h}, v{TS+qh*4+2*h}, v{TS+qh*4+2*h+1}")
        A("s_branch L_k")
        L("L_e4")
        A(f"buffer_load_dwordx2 {self.v2(FM+2)}, off, {self.sW}, s29 offset:256 sc1")
        if nt:
            A(f"ds_read_b64_tr_b16 {self.v2(LR)}, v{self.vTR}")
            self.xlane(self.lT, self.lT+1, "v_add_f32")
            A("s_waitcnt lgkmcnt(0)")
            for qh in range(2):
                A(f"v_mfma_f32_16x16x16_bf16 {self.v4(TS+4*qh)}, {self.v2(LR)}, {self.v2(LR+2+2*qh)}, 0")
        A("s_branch L_k")

    def gen(self):
        A, L, C = self.A, self.L, self.C
        self.o.append(HEADER + f"; @launch grid=(256,1,1) block=(320,1,1) lds={LDS}")
        self.o.append('.amdgcn_target "amdgcn-amd-amdhsa--gfx950"')
        self.o.append(".text"); self.o.append(f".globl {KNAME}"); self.o.append(".p2align 8")
        self.o.append(f".type {KNAME},@function"); L(KNAME)
        self.stamp(0)
        if self.padto or self.dbgt: A("s_memrealtime s[96:97]")
        if self.dbgt: A("s_mov_b32 s95, s2")
        A("s_load_dwordx16 s[4:19], s[0:1], 0")
        if self.prof or self.gl: A("s_load_dwordx2 s[20:21], s[0:1], 64")
        A("s_cmp_ge_u32 s2, 256")
        A("s_cbranch_scc1 L_end")
        A("v_lshrrev_b32 v8, 6, v0")
        A("v_and_b32 v0, 63, v0")
        if self.mapmode == 0:
            A(f"s_and_b32 {self.sRole}, s2, 1"); A(f"s_lshr_b32 {self.sPair}, s2, 1")
        elif self.mapmode == 13:
            A(f"s_bfe_u32 {self.sRole}, s2, 0x10003")
            A(f"s_lshr_b32 {self.sPair}, s2, 4"); A("s_and_b32 s3, s2, 7"); A(f"s_lshl4_add_u32 {self.sPair}, s3, {self.sPair}")
        elif self.mapmode == 14:
            A(f"s_bfe_u32 {self.sRole}, s2, 0x10003")
            A("s_bfe_u32 s3, s2, 0x20004"); A(f"s_and_b32 {self.sPair}, s2, 7"); A(f"s_lshl2_add_u32 {self.sPair}, {self.sPair}, s3")
            A("s_lshr_b32 s3, s2, 6"); A("s_lshl_b32 s3, s3, 5"); A(f"s_add_u32 {self.sPair}, {self.sPair}, s3")
        else:
            b = self.mapmode
            A(f"s_bfe_u32 {self.sRole}, s2, {0x10000+b}")
            A(f"s_lshr_b32 {self.sPair}, s2, {b+1}"); A(f"s_lshl_b32 {self.sPair}, {self.sPair}, {b}")
            A(f"s_and_b32 s3, s2, {(1<<b)-1}"); A(f"s_or_b32 {self.sPair}, {self.sPair}, s3")
        A(f"v_readfirstlane_b32 {self.sWave}, v8")
        A(f"s_lshl1_add_u32 s22, {self.sPair}, {self.sRole}")
        A("s_lshl_b32 s22, s22, 18")
        A("v_lshrrev_b32 v9, 4, v0")
        A("v_lshlrev_b32 v10, 1, v9"); A("v_xor_b32 v10, v10, v0"); A("v_and_b32 v10, 15, v10")
        A(f"s_sub_u32 {self.sWave}, {self.sWave}, 1")
        A("s_cbranch_scc0 L_comp")
        self.loader()
        L("L_comp")
        if not (self.prof or self.gl): A("s_load_dwordx2 s[20:21], s[0:1], 64")
        if self.touch:
            A(f"s_cmp_lg_u32 {self.sWave}, 0")
            A("s_cbranch_scc1 L_notouch")
            A("s_waitcnt lgkmcnt(0)")
            A("s_add_u32 s2, s8, s22"); A("s_addc_u32 s3, s9, 0")
            A("v_mov_b32 v20, s4"); A("v_mov_b32 v21, s5")
            for ln, r in enumerate((10, 12, 14, 18, 20, 2)[:self.touch-1]):
                A(f"v_writelane_b32 v20, s{r}, {ln+1}"); A(f"v_writelane_b32 v21, s{r+1}, {ln+1}")
            A(f"global_load_ubyte v{self.vDum}, v[20:21], off")
            L("L_notouch")
        A(f"s_lshl_b32 {self.sW4}, {self.sWave}, 12")
        A("s_and_b32 s23, s2, 7"); A("s_lshl_b32 s23, s23, 5"); A("s_lshr_b32 s58, s2, 3"); A(f"s_or_b32 s58, s58, {self.sWave}")
        A("s_cselect_b32 s58, 0, 1")
        C("tree DMA source offset: rows 4w+g")
        A("v_lshlrev_b32 v1, 8, v9"); A("v_lshl_add_u32 v1, v10, 4, v1")
        A(f"s_and_b32 s2, {self.sWave}, 1"); A("s_lshl_b32 s2, s2, 7"); A("v_xor_b32 v1, s2, v1")
        C("mask offset: (q%8)*16 + g*8 (+128 for g>=2: out of range)")
        A("v_and_b32 v2, 7, v0"); A("v_lshlrev_b32 v2, 4, v2"); A("v_lshl_add_u32 v2, v9, 3, v2")
        A("v_lshrrev_b32 v11, 5, v0"); A("v_lshl_add_u32 v2, v11, 7, v2")
        C("K/Q read lane bases: rho*256 + ((4s+g)^(2*(rho%8)))*16")
        A("v_and_b32 v10, 15, v0"); A("v_and_b32 v11, 7, v0"); A("v_lshlrev_b32 v11, 1, v11"); A("v_xor_b32 v11, v11, v9")
        A("v_lshlrev_b32 v3, 8, v10"); A("v_lshl_add_u32 v3, v11, 4, v3")
        for s in range(1, 4): A(f"v_xor_b32 v{3+s}, {64*s}, v3")
        A(f"v_lshlrev_b32 v{self.vFo}, 4, v0")
        C("out offset: (16*(row&1)+q)*256 + role*128 + wave*32 + (row>>1)*16")
        A(f"v_and_b32 v{self.vOut}, 31, v0"); A(f"v_lshlrev_b32 v{self.vOut}, 8, v{self.vOut}")
        A("v_lshrrev_b32 v11, 5, v0"); A(f"v_lshl_add_u32 v{self.vOut}, v11, 4, v{self.vOut}")
        A(f"s_lshl2_add_u32 s2, {self.sRole}, {self.sWave}"); A("s_lshl_b32 s3, s2, 5"); A(f"v_add_u32 v{self.vOut}, s3, v{self.vOut}")
        if self.fakeout == 1:
            A("s_lshl_b32 s3, s2, 10"); A(f"v_lshl_add_u32 v{self.vOut}, v0, 4, s3")
        if self.fakeout == 2:
            A(f"s_lshl_b32 s3, {self.sWave}, 11"); A(f"s_lshl_b32 s23, {self.sRole}, 7"); A("s_add_u32 s3, s3, s23")
            A("v_lshrrev_b32 v11, 3, v0"); A("v_and_b32 v12, 7, v0"); A("v_lshlrev_b32 v12, 4, v12"); A("v_lshl_add_u32 v11, v11, 8, v12"); A(f"v_add_u32 v{self.vOut}, s3, v11")
        if self.fakeout == 3:
            A(f"s_lshr_b32 s3, {self.sWave}, 1"); A("s_lshl_b32 s3, s3, 12"); A(f"s_lshl_b32 s23, {self.sRole}, 7"); A("s_add_u32 s3, s3, s23")
            A(f"s_and_b32 s23, {self.sWave}, 1"); A("s_lshl_b32 s23, s23, 6"); A("s_add_u32 s3, s3, s23")
            A("v_and_b32 v11, 15, v0"); A("v_lshrrev_b32 v12, 4, v0"); A("v_lshlrev_b32 v12, 4, v12"); A("v_lshl_add_u32 v11, v11, 8, v12"); A(f"v_add_u32 v{self.vOut}, s3, v11")
        C("transposed-read lane bases: row=l/4, c=l%4")
        A("v_lshrrev_b32 v10, 2, v0"); A("v_bfe_u32 v12, v0, 1, 1"); A("v_and_b32 v13, 1, v0"); A("v_lshlrev_b32 v13, 3, v13")
        C(" tree V (256-B rows): row*256 + ((8*role+2w+c/2)^(2*(row%8)))*16 + (c%2)*8")
        A("s_lshl_b32 s2, s2, 1"); A("v_add_u32 v14, s2, v12"); A("v_and_b32 v11, 7, v10"); A("v_lshlrev_b32 v11, 1, v11"); A("v_xor_b32 v11, v11, v14")
        A("v_lshl_add_u32 v8, v10, 8, v13"); A("v_lshl_add_u32 v8, v11, 4, v8"); A(f"v_add_u32 v8, {TV}, v8")
        C(" V ring (128-B rows): row*128 + ((2w+c/2)^(row&6))*16 + (c%2)*8")
        A("v_and_b32 v14, 7, v14"); A("v_and_b32 v11, 6, v10"); A("v_xor_b32 v11, v11, v14")
        A("v_lshl_add_u32 v7, v10, 7, v13"); A("v_lshl_add_u32 v7, v11, 4, v7")
        A("v_lshlrev_b32 v11, 3, v0")
        A(f"v_add_u32 v{self.vPR}, {PR}, v11")
        A(f"s_lshr_b32 s2, {self.sW4}, 2"); A(f"v_add_u32 v{self.vPW}, s2, v{self.vPR}")
        A(f"v_add_u32 v{self.vLX}, {MX}, v11")
        A("s_waitcnt lgkmcnt(0)")
        A(f"s_lshl_b32 {self.sT}, {self.sPair}, 11")
        self.srd(36, 10, 11, self.sT, 2048)
        self.srd(40, 12, 13, self.sT, 2048)
        A(f"s_lshr_b32 {self.sT}, {self.sPair}, 3"); A(f"s_lshl_b32 {self.sT}, {self.sT}, 7")
        self.srd(44, 14, 15, self.sT, 128)
        A(f"s_lshl_b32 s3, {self.sPair}, 13")
        self.srd(48, 16, 17, "s3", 8192)
        A("s_add_u32 s56, s18, s23"); A("s_addc_u32 s57, s19, 0"); A("s_mov_b32 s59, 0x20000")
        A(f"s_mul_i32 {self.sT}, {self.sPair}, 9216")
        self.srd(52, 20, 21, self.sT, 9216)
        A(f"s_lshl2_add_u32 {self.sSend}, {self.sRole}, {self.sWave}"); A(f"s_xor_b32 {self.sRecv}, {self.sSend}, 4")
        for r in (self.sSend, self.sRecv):
            A(f"s_add_u32 {r}, {r}, 1"); A(f"s_lshl_b32 {r}, {r}, 10")
        if self.mbo:
            C("mailbox: 8 whole lines of the receiver's output half per wave")
            A(f"s_lshl_b32 {self.sRecv}, {self.sWave}, 11"); A(f"s_lshl_b32 s2, {self.sRole}, 7"); A(f"s_add_u32 {self.sRecv}, {self.sRecv}, s2")
            A(f"s_xor_b32 {self.sSend}, {self.sRecv}, 0x80")
            A("v_lshrrev_b32 v11, 3, v0"); A(f"v_and_b32 v{self.vFo}, 7, v0"); A(f"v_lshlrev_b32 v{self.vFo}, 4, v{self.vFo}"); A(f"v_lshl_add_u32 v{self.vFo}, v11, 8, v{self.vFo}")
        A(f"s_mul_i32 s28, {self.sRole}, 384"); A("s_sub_u32 s29, 384, s28")
        A(f"s_lshl2_add_u32 {self.s4k}, {self.sWave}, s29"); A(f"s_add_u32 {self.s4k}, {self.s4k}, 0x80")
        C("header store offsets: lanes 0-31 w, lane 32 this wave's check word, the rest out of range")
        A(f"v_lshlrev_b32 v{self.vL16}, 2, v0"); A(f"s_lshl2_add_u32 s2, {self.sWave}, 0x80")
        A("v_cmp_lt_u32 vcc, 32, v0"); A("v_mov_b32 v11, 0x10000")
        A(f"v_writelane_b32 v{self.vL16}, s2, 32")
        A(f"v_cndmask_b32 v{self.vL16}, v{self.vL16}, v11, vcc")
        A(f"v_and_b32 v{self.vDum}, 31, v0"); A(f"v_lshlrev_b32 v{self.vDum}, 2, v{self.vDum}")
        c = (128 ** -0.5) * math.log2(math.e)
        A(f"s_mov_b32 {self.sC}, 0x{f2u(c):08x}")
        A(f"s_mov_b32 {self.sRem}, {N}")
        A(f"s_mov_b32 {self.sRd}, {self.sW4}")
        A(f"s_mov_b32 {self.sIdx}, 0"); A(f"s_mov_b32 {self.sP}, 0")
        for qh in range(2):
            A(f"v_mov_b32 v{self.mR[qh]}, 0x{f2u(-3.0e38):08x}")
            A(f"v_mov_b32 v{self.lS[qh]}, 0")
        for s in range(4):
            A(f"v_add_u32 v{self.T0+s}, {QS}, v{self.vKR[s]}")
        A(f"s_mov_b32 s78, {self.sWave}")
        A("s_mov_b32 s76, 0x200000")
        if self.stag:
            A(f"s_lshr_b32 s2, {self.sPair}, 3"); A(f"s_and_b32 s2, s2, {self.stag-1}"); A(f"s_sub_u32 {self.sSk}, {15 if self.stag > 4 else 13}, s2")
            if self.stag == 8: A(f"s_max_u32 {self.sSk}, {self.sSk}, 9")
        else: self.tl()
        if self.pre:
            A(f"s_lshr_b32 s2, {self.sPair}, 3"); A(f"s_add_u32 s2, s2, {self.sWave}"); A("s_and_b32 s2, s2, 3"); A(f"s_lshl1_add_u32 s3, {self.sRole}, 0")
            A("s_add_u32 s2, s2, s3")
            A(f"s_sub_u32 {self.sSk}, 15, s2"); A("s_sub_u32 s22, 16, s2")
        self.compute()
        L("L_fin")
        if self.dbgt:
            A("s_memrealtime s[98:99]"); A("s_waitcnt lgkmcnt(0)")
            A("s_cmp_ge_u32 s95, 8"); A("s_cbranch_scc1 L_end")
            self.srd(56, 18, 19, None, 64)
            A("s_getreg_b32 s3, hwreg(HW_REG_XCC_ID)"); A("s_lshl_b32 s3, s3, 3")
            A("s_and_b32 s96, s96, 0xfffff"); A("s_and_b32 s98, s98, 0xfffff")
            A("v_mov_b32 v10, s96"); A("v_mov_b32 v11, s98")
            A("buffer_store_dwordx2 v[10:11], off, s[56:59], s3 sc1")
        if self.padto:
            L("L_pad")
            A("s_memrealtime s[98:99]"); A("s_waitcnt lgkmcnt(0)"); A("s_sub_u32 s98, s98, s96")
            A(f"s_cmp_lt_u32 s98, {self.padto}"); A("s_cbranch_scc1 L_pad")
        if self.stamps:
            A("s_waitcnt vmcnt(0)")
            self.stamp(7)
            A("s_getreg_b32 s3, hwreg(HW_REG_XCC_ID)")
            A("s_waitcnt lgkmcnt(0)")
            A("v_mov_b32 v10, 0")
            for k in range(self.nstamp):
                A(f"v_writelane_b32 v10, s{80+2*k}, {k}")
            A("v_writelane_b32 v10, s76, 12"); A(f"v_writelane_b32 v10, {self.sPw}, 11")
            A("v_writelane_b32 v10, s3, 14")
            A(f"v_writelane_b32 v10, {self.sRole}, 15")
            A(f"v_writelane_b32 v10, {self.sPair}, 13")
            A(f"s_lshl_b32 s2, {self.sPair}, 1"); A(f"s_add_u32 s2, s2, {self.sRole}"); A("s_lshl_b32 s2, s2, 2"); A(f"s_add_u32 s2, s2, {self.sWave}")
            A("s_lshl_b32 s2, s2, 6"); A("s_add_u32 s2, s2, 0x800000")
            self.srd(52, 20, 21, None, 0x1000000)
            A("v_lshlrev_b32 v11, 2, v0")
            A("v_cmp_gt_u32 vcc, 16, v0")
            A("s_and_saveexec_b64 s[22:23], vcc")
            A(f"buffer_store_dword v10, v11, {self.sW}, s2 offen")
        L("L_end")
        A("s_endpgm")
        self.tree()
        self.o.append('.section .rodata,"a"'); self.o.append(".p2align 6"); self.o.append(f".amdhsa_kernel {KNAME}")
        for d in ("next_free_vgpr 256", "next_free_sgpr 102", "accum_offset 256", "group_segment_fixed_size 0", "kernarg_size 72",
                  "user_sgpr_count 2", "user_sgpr_kernarg_segment_ptr 1", "system_sgpr_workgroup_id_x 1"):
            self.o.append("  .amdhsa_"+d)
        self.o.append(".end_amdhsa_kernel")
        return self.finish()

    def finish(self):
        def build(nseg):
            out = []
            for l in self.o:
                if l == "@WARMCALL":
                    if self.warm:
                        out.append("  ; instruction-cache warm-up: hop (EXEC=0) through code this workgroup runs later")
                        out.append(f"  s_cmp_ge_u32 s78, {nseg}")
                        out.append("  s_cbranch_scc1 L_hskip")
                        out.append("  s_mov_b64 exec, 0")
                        for k in range(nseg):
                            out.append(f"  s_cmp_eq_u32 s78, {k}")
                            out.append(f"  s_cbranch_scc1 L_h{k*self.seg}")
                        out.append("L_hret:")
                        out.append("  s_mov_b64 exec, -1")
                        out.append("  s_add_u32 s78, s78, 4")
                        out.append("L_hskip:")
                        out.append("@HOPON")
                else: out.append(l)
            return out
        if not self.warm:
            return "\n".join(l for l in build(0) if not l.startswith("@"))+"\n"
        nseg = 1
        while True:
            base = build(nseg)
            tmp = []
            for l in base:
                if l.startswith("@"): continue
                tmp.append(l)
                if l == "L_hret:": tmp += [f"L_h{k*self.seg}:" for k in range(nseg)]
            sz = sizes_of(tmp)
            res = []; addr = 0; k = 0; nh = 0; on = False; lastline = -1; intext = True
            for l in base:
                if l == "@HOPON": on = True; lastline = addr//self.warm; continue
                if l == "@HOPOFF": on = False; continue
                if l.startswith(".section"): intext = False
                if intext and isinstr(l):
                    if on and addr//self.warm != lastline:
                        lastline = addr//self.warm
                        res.append(("hop", nh)); nh += 1; addr += 4
                    addr += sz[k]; k += 1
                res.append(l)
            need = -(-nh//self.seg)
            if need <= nseg: break
            nseg = need
        start = res.index("L_hret:")
        order = [x[1] for x in res[start:] if isinstance(x, tuple)] + [x[1] for x in res[:start] if isinstance(x, tuple)]
        out = []
        for x in res:
            if isinstance(x, tuple):
                p = order.index(x[1])
                out.append(f"L_h{p}:")
                last = (p+1) % self.seg == 0 or p+1 == nh
                out.append(f"  s_cbranch_execz {'L_hret' if last else 'L_h%d' % (p+1)}")
            else:
                out.append(x)
                if x == "L_hret:":
                    out += [f"L_h{k*self.seg}:" for k in range(nseg) if k*self.seg >= nh]
        return "\n".join(out)+"\n"

def sizes_of(lines):
    import subprocess, re, tempfile
    d = tempfile.mkdtemp()
    open(d+"/a.s", "w").write("\n".join(lines)+"\n")
    subprocess.run(["clang", "-x", "assembler", "-target", "amdgcn-amd-amdhsa", "-mcpu=gfx950", "-c", d+"/a.s", "-o", d+"/a.o"], check=True)
    dis = subprocess.run(["llvm-objdump", "-d", "--mcpu=gfx950", d+"/a.o"], capture_output=True, text=True).stdout
    sz = []
    for l in dis.splitlines():
        m = re.search(r"// ([0-9A-F]{12}): ((?:[0-9A-F]{8} ?)+)", l)
        if m: sz.append(4*len(m.group(2).split()))
    return sz
def isinstr(l):
    return l.startswith("  ") and not l.startswith("  ;") and not l.startswith("  .")

if __name__ == "__main__":
    out = sys.argv[1]
    kw = eval("dict(" + (sys.argv[2] if len(sys.argv) > 2 else "") + ")")
    open(out, "w").write(Gen(**kw).gen())
```

```python
import sys, math, struct
KNAME = "standalone__tree_speculative_verify_tree_attention_over_candidate_token_tree__sampling_kernel"
HEADER = """; Kernarg layout for this problem (72 bytes, ptrs only, base s[0:1]):
"""
def f2u(x): return struct.unpack("<I", struct.pack("<f", x))[0]
RINGB = 81920
PR, QS, TK, TV, MX, LX, LDS = 81920, 81920, 147456, 151552, 155648, 157696, 159744
N = 16

class Gen:
    def __init__(self, flags="nt", stamps=False, padto=0, mapmode=3, D=21, DV=None, nb=0, D2=32, treeat=5,
                 nohand=False, notree=False, noq=False, nopart=False, prio=3, oflags="", warm=0, seg=2,
                 frac=(0,)*8, prof=False, f0=3, forcelate=False, sfl='sc1', lfl='sc1', dg='DFHL', catch=6, forcefar=False, nearfl='nt', fs=4, fbk=(22,25,22,26,19,22,21,24), fbfl='nt', gl=0, Di=0, rewarm=False, noout=False, stag=0, touch=0, ask=4, use=2, sfl2='', qfl='', tfl='', tdg='KVME', vhalf=False, nt2=0, fs2=10, D3=None, every=False, wsdata=True, fakeout=0, mbo=True, nosmall=False, clean=True, ac=False, acfl='sc1', cw=True, split=True, pre=0, nobar=True, pfl='', dbgt=False, padx=None):
        self.padx = padx
        self.dbgt = dbgt
        self.pfl = pfl
        self.pre = pre; self.nobar = nobar
        self.split = split
        self.cw = cw
        self.ac = ac; self.acfl = acfl; clean = clean or ac
        self.nosmall = nosmall; self.clean = clean
        self.mbo = mbo
        self.fakeout = fakeout
        self.wsdata = wsdata
        self.nt2, self.fs2, self.D3, self.every = nt2, fs2, D3, every
        self.qfl, self.tfl, self.tdg, self.vhalf = qfl, tfl, tdg, vhalf
        self.sfl2 = sfl2
        self.ask = ask; self.use = use
        self.stag = stag; self.touch = touch
        self.noout = noout
        self.Di = Di; self.rewarm = rewarm
        self.gl = gl
        self.fbk = fbk; self.fbfl = fbfl
        self.nearfl = nearfl; self.fs = fs
        self.forcefar = forcefar; pc0 = pcn = 2; early = True
        self.sfl, self.lfl, self.dg, self.pc0, self.pcn, self.catch, self.early = sfl, lfl, dg, pc0, pcn, catch, early
        self.o = []
        self.flags, self.stamps, self.padto, self.mapmode = flags, stamps, padto, mapmode
        self.D, self.DV, self.nb, self.D2, self.treeat = D, DV or D, nb, D2, treeat
        self.nohand, self.notree, self.noq, self.nopart, self.prio = nohand, notree, noq, nopart, prio
        self.oflags, self.warm, self.seg, self.frac, self.prof, self.f0, self.forcelate = oflags, warm, seg, frac, prof, f0, forcelate
        assert 14 <= D <= 31 and 14 <= self.DV <= 31 and 17 <= D2 <= 32
        self.uid = 0
    def A(self, s): self.o.append("  "+s)
    def L(self, s): self.o.append(s+":")
    def C(self, s): self.o.append("  ; "+s)
    vKR = (3, 4, 5, 6); vVR = 7; vTR = 8; vPR = 9; vPW = 10; vTag = 11
    mR = (12, 13); mC = (14, 15); lS = (16, 17); T0 = 18
    St = 24; SS = 32; AO = 160; PO = 176; QR = 176; AC = 208; LR = 216; PK = 224
    vL16 = 228; vDum = 229; vMask = 230; vLX = 232; vOut = 233; vFo = 234
    TS = 236
    fa = (244, 246); FM = 248
    mT = 252; lT = 254; ft = (56, 58)
    DM = 32; PBF = 36; fb = (44, 46); tw = 48; GM = 52
    @staticmethod
    def v4(r): return f"v[{r}:{r+3}]"
    @staticmethod
    def v2(r): return f"v[{r}:{r+1}]"
    def Q(self, qh, s): return self.v4(self.QR + (qh*4+s)*4)
    sX, sQ, sKT, sVT, sM, sO, sW = "s[24:27]", "s[32:35]", "s[36:39]", "s[40:43]", "s[44:47]", "s[48:51]", "s[52:55]"
    sVb = (28, 29)
    sPair, sRole, sWave, sSk, sRem, sA, sM0, sRd, sIdx, sP, sW4, sT = ["s%d" % i for i in range(60, 72)]
    sC, s4k, sF, sPw, sCnt, sSend, sRecv = "s72", "s73", "s74", "s75", "s79", "s30", "s31"
    nstamp = 0
    def stamp(self, idx):
        if self.stamps:
            r = 80 + 2*idx
            self.nstamp = max(self.nstamp, idx+1)
            self.A(f"s_memrealtime s[{r}:{r+1}]")
    def ringadv(self, r):
        self.A(f"s_add_u32 {r}, {r}, 0x4000")
        self.A(f"s_cmp_ge_u32 {r}, {RINGB}")
        self.A(f"s_cselect_b32 s77, {RINGB}, 0")
        self.A(f"s_sub_u32 {r}, {r}, s77")
    def xlane(self, a, b, op):
        A = self.A
        A("s_nop 1")
        A(f"v_permlane32_swap_b32 v{a}, v{b}")
        A(f"{op} v{a}, v{a}, v{b}")
        A(f"v_mov_b32 v{b}, v{a}")
        A("s_nop 1")
        A(f"v_permlane16_swap_b32 v{a}, v{b}")
        A(f"{op} v{a}, v{a}, v{b}")
        A(f"v_mov_b32 v{b}, v{a}")
        A("s_nop 1")
        A(f"v_permlane32_swap_b32 v{a}, v{b}")
    def srd(self, d, lo, hi, add, nbytes):
        A = self.A
        if add is None:
            A(f"s_mov_b32 s{d}, s{lo}"); A(f"s_mov_b32 s{d+1}, s{hi}")
        else:
            A(f"s_add_u32 s{d}, s{lo}, {add}"); A(f"s_addc_u32 s{d+1}, s{hi}, 0")
        A(f"s_mov_b32 s{d+2}, {nbytes}")
        A(f"s_mov_b32 s{d+3}, 0x20000")
    def rload(self, ins):
        if self.nopart: return
        if self.nearfl == 'sc1':
            self.A(ins+" sc1"); return
        self.uid += 1
        u = self.uid
        self.A(f"s_cmp_eq_u32 {self.sPw}, 1")
        self.A(f"s_cbranch_scc1 L_r{u}")
        self.A(ins+" sc1")
        self.A(f"s_branch L_rr{u}")
        self.L(f"L_r{u}")
        self.A(ins+" "+self.nearfl)
        self.L(f"L_rr{u}")
    def qk(self, dst=None):
        A = self.A
        dst = self.St if dst is None else dst
        for s in range(4):
            A(f"s_waitcnt lgkmcnt({3-s})")
            for qh in range(2):
                d = self.v4(dst+qh*4)
                A(f"v_mfma_f32_16x16x32_bf16 {d}, {self.v4(self.AO+s*4)}, {self.Q(qh,s)}, {'0' if s == 0 else d}")
    def pcalc(self):
        A = self.A
        A(f"s_set_gpr_idx_on {self.sIdx}, gpr_idx(SRC0)")
        for qh in range(2):
            for r in range(4):
                A(f"v_fma_f32 v{self.St+qh*4+r}, v{self.SS+qh*4+r}, {self.sC}, -v{self.mC[qh]}")
        A("s_set_gpr_idx_off")
        for r in range(4):
            for qh in range(2):
                A(f"v_exp_f32 v{self.St+qh*4+r}, v{self.St+qh*4+r}")
        A(f"s_add_u32 {self.sIdx}, {self.sIdx}, 8")
        for r in range(4):
            for qh in range(2):
                A(f"v_add_f32 v{self.lS[qh]}, v{self.lS[qh]}, v{self.St+qh*4+r}")
        for qh in range(2):
            for h in range(2):
                A(f"v_cvt_pk_bf16_f32 v{self.PK+qh*2+h}, v{self.St+qh*4+2*h}, v{self.St+qh*4+2*h+1}")
        A(f"ds_write2st64_b64 v{self.vPW}, {self.v2(self.PK)}, {self.v2(self.PK+2)} offset0:0 offset1:1")
        A(f"v_add_u32 v{self.vPW}, 0x1000, v{self.vPW}")

    def ldk(self, i):
        self.A(f"buffer_load_dwordx4 v{1+i%2}, {self.sX}, {self.sA} offen offset:{i*256} {self.flags} lds")
    def ldv(self, j):
        self.A(f"buffer_load_dwordx4 v{5+j//8}, {self.sX}, {self.sA} offen offset:{(j%8)*512} {self.flags} lds")
    def m0k(self, i): self.A(f"s_mov_b32 m0, {self.sM0}" if i == 0 else "s_addk_i32 m0, 0x300")
    def m0v(self, j): self.A(f"s_mov_b32 m0, {self.sM0}" if j == 0 else ("s_addk_i32 m0, 0x1200" if j == 8 else "s_addk_i32 m0, 0x200"))
    def pstamp(self):
        if self.prof:
            A = self.A
            A("s_waitcnt lgkmcnt(0)"); A("s_mov_b32 m0, s79"); A("v_writelane_b32 v12, s44, m0"); A("s_add_u32 s79, s79, 1"); A("s_memrealtime s[44:45]")
    def gated(self, D, m0, ld, first=None, fs=None):
        A, L = self.A, self.L
        fr = any(self.frac) or self.fbk
        if self.fbk:
            self.uid += 1
            A(f"s_bitcmp1_b32 {self.sRem}, 0")
            if self.every:
                u = self.uid
                A("v_add_u32 v21, -1, v15")
                A("v_add_u32 v15, 1, v15")
                A(f"s_cbranch_scc0 L_e{u}a")
                A("v_cmp_ge_u32 vcc, v14, v21")
                A(f"buffer_load_ubyte v14, v0, s[56:59], 0 offen {self.fbfl}")
                A(f"s_branch L_e{u}b")
                L(f"L_e{u}a")
                A("v_cmp_ge_u32 vcc, v20, v21")
                A(f"buffer_load_ubyte v20, v0, s[56:59], 0 offen {self.fbfl}")
                L(f"L_e{u}b")
                A("s_bcnt1_i32_b64 s2, vcc")
                A("buffer_store_byte v15, v16, s[56:59], s76 offen")
                A("s_cmp_ge_u32 s2, s78")
                A("s_cselect_b64 vcc, -1, 0")
                A(f"s_branch L_f{u}")
            A(f"s_cbranch_scc0 L_f{self.uid}")
            A("v_cmp_ge_u32 vcc, v14, v15")
            A("v_add_u32 v15, 1, v15")
            if self.gl:
                A("v_readlane_b32 s3, v14, 27")
                A("s_and_b32 s2, vcc_lo, 0x7ffffff")
                A("s_bcnt1_i32_b32 s2, s2")
                A("s_cmp_eq_u32 s3, 0"); A("s_cselect_b32 s3, 12, s3")
                A(f"s_mul_i32 s3, s3, {self.gl}"); A("s_lshl2_add_u32 s2, s2, s3")
                A("s_cmp_lg_u32 s76, 0")
                A(f"s_cbranch_scc1 L_fx{self.uid}")
                A("s_waitcnt lgkmcnt(0)")
                A("s_add_u32 s47, s46, 1")
                A("s_mov_b32 s3, 8")
                for x in range(8):
                    A(f"s_cmp_eq_u32 s{36+x}, s47"); A("s_addc_u32 s3, s3, 0")
                A(f"s_cmp_eq_u32 {self.sRem}, {2*N-1}"); A("s_cselect_b32 s3, 0, s3")
                A("v_mov_b32 v19, s3"); A("v_mov_b32 v17, s47")
                A("s_add_u32 s52, s52, 0x400"); A("s_addc_u32 s53, s53, 0"); A("s_add_u32 s54, s54, 0x400")
                for x in range(8):
                    A(f"s_load_dword s{36+x}, s[52:53], {x*128} glc")
                A("buffer_store_byte v19, v16, s[56:59], 0 offen offset:27")
                A("buffer_store_dword v17, v18, s[48:51], s54 offen sc1")
                L(f"L_fx{self.uid}")
            else:
                A("s_bcnt1_i32_b64 s2, vcc")
            if self.clean and first is None:
                A(f"s_cmp_lg_u32 {self.sRem}, 1")
                A(f"s_cbranch_scc1 L_c{self.uid}")
                if not self.cw:
                    A("s_cmp_lg_u32 s76, 0")
                    A(f"s_cbranch_scc1 L_d{self.uid}")
                    A("buffer_store_byte v15, v16, s[56:59], s76 offen sc1")
                A(f"s_branch L_d{self.uid}")
                L(f"L_c{self.uid}")
            A(f"buffer_load_ubyte v14, v0, s[56:59], 0 offen {self.fbfl}")
            A("buffer_store_byte v15, v16, s[56:59], s76 offen")
            L(f"L_d{self.uid}")
            A("s_cmp_ge_u32 s2, s78")
            A("s_cselect_b64 vcc, -1, 0")
            L(f"L_f{self.uid}")
        elif fr:
            A(f"s_bitcmp1_b32 s78, {self.sRem}"); A("s_cselect_b64 vcc, -1, 0")
        Dh = D + ((fs or self.fs) if fr else 0)
        assert Dh <= 32
        for i in range(16):
            m0(i)
            if fr:
                self.uid += 1
                A(f"s_waitcnt vmcnt({Dh-1})")
                A(f"s_cbranch_vccnz L_g{self.uid}")
            A(f"s_waitcnt vmcnt({D-1})")
            if fr: L(f"L_g{self.uid}")
            ld(i)
            if i == Dh-17:
                if first:
                    A(f"s_cmp_eq_u32 {self.sRem}, {2*N-1}")
                    A(f"s_cbranch_scc1 {first}")
                A("s_barrier")
                if first: L(first)
        self.pstamp()
    def loader(self):
        A, L, C = self.A, self.L, self.C
        L("L_loader")
        C("K source lane offsets: g*4096 + (slot ^ 2g ^ 8*(i%2))*16 ; row i through the immediate offset")
        A("v_lshlrev_b32 v1, 12, v9"); A("v_lshl_add_u32 v1, v10, 4, v1")
        A("v_xor_b32 v2, 0x80, v1")
        if self.prio: A(f"s_setprio {self.prio}")
        A(f"s_mov_b32 {self.sA}, 0"); A("s_mov_b32 m0, 0")
        A("s_mov_b32 s26, 0x40000"); A("s_mov_b32 s27, 0x20000")
        A("s_waitcnt lgkmcnt(0)")
        A("s_add_u32 s24, s6, s22"); A("s_addc_u32 s25, s7, 0")
        fill = [f"s_lshl_b32 s3, {self.sPair}, 13", "s_add_u32 s32, s4, s3", "s_addc_u32 s33, s5, 0", "s_mov_b32 s34, 8192", "s_mov_b32 s35, 0x20000",
                "v_lshlrev_b32 v3, 8, v9", "v_lshl_add_u32 v3, v10, 4, v3", "v_xor_b32 v4, 0x80, v3", f"s_movk_i32 {self.s4k}, 0x1000",
                f"s_mov_b32 {self.sM0}, 0", f"s_mov_b32 {self.sRem}, {2*N-1}"]
        for i in range(16):
            self.ldk(i)
            if i < 15:
                A("s_addk_i32 m0, 0x300")
                if fill:
                    x = fill.pop(0); A(x)
                    if x.startswith("s_add_u32"): A(fill.pop(0))
                else: A("s_nop 0")
        if self.prof: A("s_memrealtime s[44:45]"); A("s_mov_b32 s79, 0"); A("s_mov_b32 s23, s2")
        if not self.noq:
            for h in range(2):
                A(f"s_mov_b32 m0, {QS+h*4096}"); A("s_nop 0")
                for x in range(4):
                    A(f"buffer_load_dwordx4 v{3+x%2}, {self.sQ}, {self.s4k if h else '0'} offen offset:{x*1024} {self.qfl} lds")
        if self.Di:
            A(f"s_movk_i32 {self.sA}, 0x4000"); A(f"s_mov_b32 {self.sM0}, {self.sA}"); A(f"s_mov_b32 {self.sRem}, {2*N-2}"); A("s_mov_b64 vcc, 0")
            ni = min(16, max(0, self.Di-24))
            for i in range(ni):
                self.m0k(i); A("s_nop 0"); self.ldk(i)
        C("V source lane offsets: u=l/8: (u%4)*4096 + (u/4)*256 + ((l%8) ^ (u&6))*16")
        A("v_lshrrev_b32 v7, 3, v0"); A("v_and_b32 v8, 6, v7"); A("v_xor_b32 v8, v8, v0"); A("v_and_b32 v8, 7, v8"); A("v_lshlrev_b32 v8, 4, v8")
        A("v_and_b32 v5, 3, v7"); A("v_lshl_add_u32 v5, v5, 12, v8"); A("v_lshrrev_b32 v7, 2, v7"); A("v_lshl_add_u32 v5, v7, 8, v5")
        A("v_add_u32 v6, 0x4000, v5")
        if self.fbk:
            A("s_lshr_b32 s76, s2, 3"); A("s_and_b32 s3, s2, 7"); A("s_lshl_b32 s3, s3, 5")
            self.srd(56, 18, 19, "s3", 32)
            A("v_mov_b32 v14, 0"); A(f"v_mov_b32 v15, {2 if self.every else 1}"); A("v_mov_b32 v20, 0"); A("v_lshlrev_b32 v16, 5, v0")
            pk = sum((t & 31) << (5*x) for x, t in enumerate(self.fbk))
            A("s_getreg_b32 s2, hwreg(HW_REG_XCC_ID)"); A("s_and_b32 s2, s2, 7"); A("s_mul_i32 s2, s2, 5")
            A(f"s_mov_b32 s30, 0x{pk & 0xffffffff:08x}"); A(f"s_mov_b32 s31, 0x{pk >> 32:08x}")
            A("s_lshr_b64 s[30:31], s[30:31], s2"); A("s_and_b32 s78, s30, 31")
            if self.gl:
                self.srd(48, 20, 21, "0x400000", 0x8000)
                A("s_mov_b32 s52, s48"); A("s_mov_b32 s53, s49"); A("s_lshl_b32 s54, s3, 2")
                A("s_load_dword s46, s[52:53], 0")
                A("v_lshlrev_b32 v18, 15, v0")
                A(f"s_lshl2_add_u32 s78, s78, {self.gl*12}")
                A("s_cmp_ge_u32 s76, 27"); A("s_cselect_b32 s76, 64, s76")
                for x in range(8): A(f"s_mov_b32 s{36+x}, 0")
        elif any(self.frac):
            A("s_getreg_b32 s2, hwreg(HW_REG_XCC_ID)"); A("s_and_b32 s2, s2, 7"); A("s_mov_b32 s78, 0")
            for x in range(8):
                m = 0
                for b in range(32):
                    if int((b+1)*self.frac[x]+1e-9) != int(b*self.frac[x]+1e-9): m |= 1 << b
                if m:
                    A(f"s_cmp_eq_u32 s2, {x}"); A(f"s_cselect_b32 s78, 0x{m:08x}, s78")
        if self.Di:
            for i in range(ni, 16):
                self.m0k(i); A(f"s_waitcnt vmcnt({self.Di-1})"); self.ldk(i)
            self.pstamp()
        L("L_lk")
        A(f"s_add_u32 {self.sA}, {self.sA}, 0x4000")
        self.ringadv(self.sM0)
        self.gated(self.D, self.m0k, self.ldk, first=None if self.Di else "L_lkb")
        A(f"s_sub_u32 {self.sRem}, {self.sRem}, 1")
        A(f"s_cmp_lg_u32 {self.sRem}, {N}")
        A("s_cbranch_scc1 L_lk")
        self.o.append("@HOPON")
        A("s_add_u32 s24, s8, s22"); A("s_addc_u32 s25, s9, 0")
        A(f"s_lshl_b32 {self.sT}, {self.sRole}, 7")
        A(f"s_xor_b32 {self.sA}, {self.sT}, 0x80")
        L("L_lv")
        self.ringadv(self.sM0)
        self.gated(self.DV, self.m0v, self.ldv)
        A(f"s_add_u32 {self.sA}, {self.sA}, 0x8000")
        A(f"s_sub_u32 {self.sRem}, {self.sRem}, 1")
        A(f"s_cmp_eq_u32 {self.sRem}, {N//2}")
        A(f"s_cselect_b32 {self.sA}, {self.sT}, {self.sA}")
        A(f"s_cmp_lg_u32 {self.sRem}, {self.nb or self.nt2}")
        A("s_cbranch_scc1 L_lv")
        if self.nt2:
            L("L_lw")
            self.ringadv(self.sM0)
            self.gated(self.D3 or self.DV, self.m0v, self.ldv, fs=self.fs2)
            A(f"s_add_u32 {self.sA}, {self.sA}, 0x8000")
            A(f"s_sub_u32 {self.sRem}, {self.sRem}, 1")
            A(f"s_cmp_lg_u32 {self.sRem}, 0")
            A("s_cbranch_scc1 L_lw")
        sig = -2; nb = self.nb
        for st in range(nb):
            self.ringadv(self.sM0)
            for i in range(16):
                j = st*16+i
                self.m0v(i)
                A(f"s_waitcnt vmcnt({self.D2-1})")
                self.ldv(i)
                if j - self.D2 == sig*16+15:
                    A("s_barrier"); sig += 1
            A(f"s_add_u32 {self.sA}, {self.sA}, 0x8000")
            self.pstamp()
        while sig < nb:
            A(f"s_waitcnt vmcnt({(nb-1-sig)*16})")
            self.pstamp()
            A("s_barrier"); sig += 1
        if self.gl:
            A(f"s_or_b32 s2, {self.sPair}, {self.sRole}"); A("s_cbranch_scc1 L_ne")
            A("buffer_store_dword v17, v18, s[48:51], 0 offen")
            L("L_ne")
        if self.prof:
            self.pstamp()
            A("v_writelane_b32 v12, s80, 60"); A(f"v_writelane_b32 v12, {self.sRole}, 61"); A("s_getreg_b32 s3, hwreg(HW_REG_XCC_ID)"); A("v_writelane_b32 v12, s3, 62")
            A("v_writelane_b32 v12, s23, 63")
            A("s_getreg_b32 s3, hwreg(HW_REG_HW_ID)"); A("v_writelane_b32 v12, s3, 59")
            self.srd(52, 20, 21, None, 0x1000000)
            A(f"s_lshl_b32 s2, {self.sPair}, 1"); A(f"s_add_u32 s2, s2, {self.sRole}"); A("s_lshl_b32 s2, s2, 8"); A("s_add_u32 s2, s2, 0x810000")
            A("v_lshlrev_b32 v13, 2, v0")
            A(f"buffer_store_dword v12, v13, {self.sW}, s2 offen")
        A("s_endpgm")
        self.o.append("@HOPOFF")

    def compute(self):
        A, L, C = self.A, self.L, self.C
        T0, LR, TS, St = self.T0, self.LR, self.TS, self.St
        LT = self.lS[0]
        fa, fb, tw, FM, GM, DM, PBF = self.fa, self.fb, self.tw, self.FM, self.GM, self.DM, self.PBF
        C("---- K phase")
        L("L_k")
        self.o.append("@WARMCALL")
        A("s_barrier")
        A(f"s_cmp_lg_u32 {self.sIdx}, 0")
        A("s_cbranch_scc1 L_k1")
        self.stamp(1)
        for qh in range(2):
            for s in range(4):
                A(f"ds_read_b128 {self.Q(qh,s)}, v{T0+s} offset:{qh*4096}")
        L("L_k1")
        for s in range(4):
            A(f"v_add_u32 v{T0+s}, {self.sRd}, v{self.vKR[s]}")
            A(f"ds_read_b128 {self.v4(self.AO+s*4)}, v{T0+s}")
        self.ringadv(self.sRd)
        self.qk()
        A("s_nop 7")
        for h in range(2):
            for qh in range(2):
                A(f"v_max3_f32 v{self.mR[qh]}, v{self.mR[qh]}, v{St+qh*4+2*h}, v{St+qh*4+2*h+1}")
        A(f"s_set_gpr_idx_on {self.sIdx}, gpr_idx(DST)")
        for k in range(8):
            A(f"v_mov_b32 v{self.SS+k}, v{St+k}")
        A("s_set_gpr_idx_off")
        A(f"s_add_u32 {self.sIdx}, {self.sIdx}, 8")
        A(f"s_sub_u32 {self.sRem}, {self.sRem}, 1")
        if self.stag:
            A(f"s_cmp_eq_u32 {self.sRem}, {self.sSk}")
            A("s_cbranch_scc1 L_tl")
        if self.pre == 1:
            A(f"s_cmp_lg_u32 {self.sRem}, {self.sSk}")
            A("s_cbranch_scc1 L_k3")
            A(f"buffer_load_dwordx4 {self.v4(self.PK)}, v{self.vFo}, {self.sO if self.mbo else self.sW}, {self.sRecv} offen {self.pfl}")
            L("L_k3")
        A(f"s_cmp_gt_u32 {self.sRem}, 7")
        A("s_cbranch_scc1 L_k")
        for rem, lab in ((7, "L_e0"), (5, "L_e1"), (4, "L_e2"), (3, "L_e3"), (2, "L_e4")):
            A(f"s_cmp_eq_u32 {self.sRem}, {rem}")
            A(f"s_cbranch_scc1 {lab}")
        A(f"s_cmp_lg_u32 {self.sRem}, 0")
        A("s_cbranch_scc1 L_k")
        C("---- phase change")
        self.stamp(2)
        self.xlane(self.mR[0], self.mR[1], "v_max_f32")
        A(f"s_lshr_b32 s2, {self.sW4}, 3")
        A(f"v_add_u32 v{T0}, s2, v{self.vLX}")
        A(f"ds_write_b64 v{T0}, {self.v2(self.mR[0])}")
        if self.nobar:
            A(f"v_mov_b32 v{T0+3}, {TK}"); A(f"v_mov_b32 v{T0+4}, 0"); A(f"ds_write_b32 v{T0+3}, v{T0+4}")
        A(f"s_sub_u32 {self.sRd}, {self.sRd}, {self.sW4}")
        A(f"s_mov_b32 {self.sRem}, {N}")
        A(f"s_mov_b32 {self.sIdx}, 0")
        A(f"s_mov_b32 {self.sCnt}, {self.pc0}"); A(f"s_mov_b32 {self.sF}, 0")
        for r in range(0, 8, 2):
            A(f"v_mov_b64 {self.v2(self.AC+r)}, 0")
        A("s_waitcnt lgkmcnt(0)")
        A("s_barrier")
        for k in range(2):
            A(f"ds_read2st64_b64 {self.v4(LR+4*k)}, v{self.vLX} offset0:{2*k} offset1:{2*k+1}")
        A("s_waitcnt lgkmcnt(0)")
        for qh in range(2):
            A(f"v_max3_f32 v{self.mR[qh]}, v{LR+qh}, v{LR+2+qh}, v{LR+4+qh}")
            A(f"v_max_f32 v{self.mR[qh]}, v{self.mR[qh]}, v{LR+6+qh}")
            A(f"v_mul_f32 v{self.mC[qh]}, {self.sC}, v{self.mR[qh]}")
        L("L_pc")
        self.pcalc()
        A(f"s_sub_u32 {self.sCnt}, {self.sCnt}, 1")
        A(f"s_cmp_lg_u32 {self.sCnt}, 0")
        A("s_cbranch_scc1 L_pc")
        A(f"s_mov_b32 {self.sCnt}, {self.pcn}")
        A(f"s_cmp_lg_u32 {self.sIdx}, {8*N}")
        A("s_cbranch_scc1 L_vb")
        C("all P done: publish this wave's l")
        self.xlane(self.lS[0], self.lS[1], "v_add_f32")
        A(f"s_lshr_b32 s2, {self.sW4}, 3")
        A(f"v_add_u32 v{T0}, s2, v{self.vLX}")
        A(f"ds_write_b64 v{T0}, {self.v2(self.lS[0])} offset:2048")
        L("L_vb")
        if self.pre == 2:
            A(f"s_cmp_lg_u32 {self.sRem}, s22")
            A("s_cbranch_scc1 L_vb3")
            A(f"buffer_load_dwordx4 v[36:39], v{self.vFo}, {self.sO if self.mbo else self.sW}, {self.sRecv} offen {self.pfl}")
            L("L_vb3")
        A(f"s_mov_b32 {self.sSk}, 1")
        A("s_waitcnt lgkmcnt(0)")
        A("s_barrier")
        L("L_v")
        A(f"v_add_u32 v{T0+1}, {self.sP}, v{self.vPR}")
        A(f"v_add_u32 v{T0}, {self.sRd}, v{self.vVR}")
        for ks in range(4):
            for qh in range(2):
                A(f"ds_read2st64_b64 {self.v4(self.PO+(ks*2+qh)*4)}, v{T0+1} offset0:{ks*4+qh} offset1:{ks*4+2+qh}")
        self.ringadv(self.sRd)
        A(f"s_add_u32 {self.sP}, {self.sP}, 0x2000"); A(f"s_and_b32 {self.sP}, {self.sP}, 0xffff")
        A(f"s_sub_u32 {self.sRem}, {self.sRem}, 1")
        A(f"s_cmp_lg_u32 {self.sSk}, 0")
        A(f"s_mov_b32 {self.sSk}, 0")
        A(f"s_waitcnt lgkmcnt({6 if self.nobar else 7})")
        A("s_cbranch_scc1 L_v1")
        A("s_barrier")
        self.stamp(4)
        L("L_v1")
        if self.nobar: A(f"ds_read_b32 v{T0+2}, v{T0+3}")
        for ks in range(4):
            for b in range(2):
                A(f"ds_read_b64_tr_b16 {self.v2(self.AO+ks*4+2*b)}, v{T0} offset:{(ks*2+b)*2048}")
        A(f"s_cmp_eq_u32 {self.sRem}, 0")
        for ks in range(4):
            A(f"s_waitcnt lgkmcnt({6-2*ks})")
            for qh in range(2):
                a = self.v4(self.AC+4*qh)
                A(f"v_mfma_f32_16x16x32_bf16 {a}, {self.v4(self.AO+ks*4)}, {self.v4(self.PO+(ks*2+qh)*4)}, {a}")
        A("s_cbranch_scc1 L_done")
        A(f"s_cmp_le_u32 {self.sRem}, {self.use}")
        A("s_cbranch_scc1 L_sm")
        A(f"s_cmp_ge_u32 {self.sRem}, 9")
        A("s_cbranch_scc1 L_pc")
        A(f"s_cmp_eq_u32 {self.sRem}, 8")
        A("s_cbranch_scc1 L_sw")
        if self.split:
            assert self.catch != 7
            A(f"s_cmp_eq_u32 {self.sRem}, 7")
            A("s_cbranch_scc1 L_sw2")
        A(f"s_cmp_eq_u32 {self.sRem}, {self.ask}")
        A("s_cbranch_scc1 L_ask")
        assert self.catch not in (8, self.ask) and self.use < self.catch < 8 and self.use < self.ask < 8
        A(f"s_cmp_eq_u32 {self.sRem}, {self.catch}")
        A(f"s_cselect_b32 {self.sSk}, 1, 0")
        A("s_branch L_v")
        MS = 32
        MR = 60
        L("L_sw")
        C("end of the partner's column half: l total; park the partial where the partner's output goes, and {w, check}")
        C("in the workspace; restart the accumulators. Partner's hello equal to mine: same die, may stay in its L2")
        for k in range(2):
            A(f"ds_read2st64_b64 {self.v4(LR+4*k)}, v{self.vLX} offset0:{4+2*k} offset1:{5+2*k}")
        A("s_waitcnt lgkmcnt(0)")
        A(f"v_pk_add_f32 {self.v2(LR)}, {self.v2(LR)}, {self.v2(LR+2)}")
        A(f"v_pk_add_f32 {self.v2(LR+4)}, {self.v2(LR+4)}, {self.v2(LR+6)}")
        A(f"v_pk_add_f32 {self.v2(LT)}, {self.v2(LR)}, {self.v2(LR+4)}")
        for qh in range(2):
            A(f"v_rcp_f32 v{fa[qh]}, v{LT+qh}")
        for qh in range(2):
            A(f"v_log_f32 v{LR+qh}, v{LT+qh}")
        for p in range(4):
            a = self.AC+2*p
            A(f"v_pk_mul_f32 {self.v2(a)}, {self.v2(a)}, {self.v2(fa[p//2])} op_sel_hi:[1,0]")
        for p in range(4):
            a = self.AC+2*p
            A(f"v_cvt_pk_bf16_f32 v{MS+p}, v{a}, v{a+1}")
        for r in range(0, 8, 2):
            A(f"v_mov_b64 {self.v2(self.AC+r)}, 0")
        if self.split:
            A("s_branch L_v")
            L("L_sw2")
        A("s_waitcnt vmcnt(0)")
        A(f"v_cmp_eq_u64 vcc, {self.v2(FM)}, {self.v2(FM+2)}")
        A(f"v_pk_add_f32 {self.v2(LR)}, {self.v2(LR)}, {self.v2(self.mC[0])}")
        A("s_mov_b32 s2, 0xffff0000"); A("s_mov_b32 s3, 0xffff0000")
        A("s_cmp_eq_u64 vcc, -1")
        A(f"s_cselect_b32 {self.sPw}, {0 if self.forcefar else 1}, 0")
        A(f"v_cndmask_b32 v{MS+4}, v{LR}, v{LR+1}, s[2:3]")
        def chk(d, m):
            A(f"v_add3_u32 v{d}, v{m}, v{m+1}, v{m+2}")
            A(f"v_add3_u32 v{d}, v{m+3}, v{m+4}, v{d}")
            for r in (8, 4, 2, 1):
                A("s_nop 1")
                A(f"v_add_u32_dpp v{d}, v{d}, v{d} row_ror:{r} row_mask:0xf bank_mask:0xf")
            A(f"v_readfirstlane_b32 s2, v{self.vTag}")
            for ln in (0, 16, 32, 48):
                A(f"v_readlane_b32 s3, v{d}, {ln}")
                A("s_add_u32 s2, s2, s3")
        for p in range(4): A(f"v_xor_b32 v{MS+p}, v{MS+p}, v235")
        chk(MS+5, MS)
        A(f"v_writelane_b32 v{MS+4}, s2, 32")
        nxt = "L_v"
        if self.forcelate:
            A("s_branch L_v")
            L("L_flag2")
            nxt = "L_done2"
        A(f"s_cmp_eq_u32 {self.sPw}, 1")
        A("s_cbranch_scc1 L_sw1")
        for fl, lab in (("sc1", "L_sw1"), ("", None)):
            if not self.nopart:
                A(f"buffer_store_dwordx4 {self.v4(MS)}, v{self.vFo}, {self.sO if self.mbo else self.sW}, {self.sSend} offen {fl}")
                A(f"buffer_store_dword v{MS+4}, v{self.vL16}, {self.sW}, s28 offen {fl}")
            A(f"s_branch {nxt}")
            if lab: L(lab)
        C("take the partner's message (asked for earlier); ask again while its check word does not match")
        L("L_sm")
        if self.stamps:
            A(f"s_cmp_lg_u32 {self.sRem}, 1"); A("s_cbranch_scc1 L_sm0"); self.stamp(3); L("L_sm0")
        A(f"s_cmp_eq_u32 {self.sF}, 3")
        A("s_cbranch_scc1 L_v")
        A("s_waitcnt vmcnt(0)")
        chk(tw, MR)
        A(f"v_readfirstlane_b32 s3, v{MR+5}")
        A("s_cmp_eq_u32 s2, s3")
        if self.nohand: A("s_branch L_hdr")
        A("s_cbranch_scc1 L_hdr")
        A("s_sub_u32 s76, s76, 1")
        A("s_cbranch_scc1 L_hdr")
        L("L_ask")
        if not self.nopart:
            A(f"buffer_load_dwordx4 {self.v4(MR)}, v{self.vFo}, {self.sO if self.mbo else self.sW}, {self.sRecv} offen sc1")
            A(f"buffer_load_dword v{MR+4}, v{self.vDum}, {self.sW}, s29 offen sc1")
            A(f"buffer_load_dword v{MR+5}, off, {self.sW}, {self.s4k} sc1")
        A("s_branch L_smx")
        L("L_hdr")
        if self.clean and self.cw and self.fbk:
            C("one wave per progress group writes its line through now, so that it is not left for the end of the kernel")
            A(f"buffer_store_byte v0, v{self.vFo}, s[56:59], 0 offen sc1")
        ft, mT, lT = self.ft, self.mT, self.lT
        PBF = 40; fb = (52, 54)
        A(f"v_mov_b32 v{MR+5}, v{MR+4}")
        for p in range(4): A(f"v_xor_b32 v{MR+p}, v{MR+p}, v235")
        A(f"v_permlane16_swap_b32 v{MR+4}, v{MR+5}")
        for qh in range(2):
            A(f"v_max3_f32 v{tw+qh}, v{self.mC[qh]}, v{MR+4+qh}, v{mT+qh}")
        for qh in range(2):
            A(f"v_sub_f32 v{fa[qh]}, v{self.mC[qh]}, v{tw+qh}")
            A(f"v_sub_f32 v{fb[qh]}, v{MR+4+qh}, v{tw+qh}")
            A(f"v_sub_f32 v{ft[qh]}, v{mT+qh}, v{tw+qh}")
        for qh in range(2):
            A(f"v_exp_f32 v{fa[qh]}, v{fa[qh]}"); A(f"v_exp_f32 v{fb[qh]}, v{fb[qh]}"); A(f"v_exp_f32 v{ft[qh]}, v{ft[qh]}")
        A(f"s_mov_b32 {self.sF}, 3")
        for qh in range(2):
            A(f"v_fma_f32 v{tw+qh}, v{LT+qh}, v{fa[qh]}, v{fb[qh]}")
        for qh in range(2):
            A(f"v_fmac_f32 v{tw+qh}, v{lT+qh}, v{ft[qh]}")
        for qh in range(2):
            A(f"v_rcp_f32 v{tw+qh}, v{tw+qh}")
        for p in range(4):
            r = MR+p
            A(f"v_lshlrev_b32 v{PBF+2*p}, 16, v{r}"); A(f"v_and_b32 v{PBF+2*p+1}, 0xffff0000, v{r}")
        for qh in range(2):
            A(f"v_mul_f32 v{fa[qh]}, v{fa[qh]}, v{tw+qh}"); A(f"v_mul_f32 v{fb[qh]}, v{fb[qh]}, v{tw+qh}"); A(f"v_mul_f32 v{ft[qh]}, v{ft[qh]}, v{tw+qh}")
        for p in range(4):
            A(f"v_pk_mul_f32 {self.v2(TS+2*p)}, {self.v2(TS+2*p)}, {self.v2(ft[p//2])} op_sel_hi:[1,0]")
        for p in range(4):
            A(f"v_pk_fma_f32 {self.v2(PBF+2*p)}, {self.v2(PBF+2*p)}, {self.v2(fb[p//2])}, {self.v2(TS+2*p)} op_sel_hi:[1,0,1]")
        if self.nobar:
            C("count the waves that are done with the mailbox before the last barrier")
            A(f"s_cmp_eq_u32 {self.sRem}, 0")
            A("s_cbranch_scc1 L_smx")
            A("s_mov_b64 exec, 1")
            A(f"v_mov_b32 v{T0+4}, 1")
            A(f"ds_add_u32 v{T0+3}, v{T0+4}")
            A("s_mov_b64 exec, -1")
        L("L_smx")
        A(f"s_cmp_lg_u32 {self.sRem}, 0")
        A("s_cbranch_scc1 L_v")
        if self.forcelate: A("s_branch L_done2")
        L("L_done")
        self.stamp(5)
        if self.forcelate:
            A("s_branch L_flag2")
            L("L_done2")
        A(f"s_cmp_lg_u32 {self.sF}, 3")
        A("s_cbranch_scc1 L_sm")
        if self.mbo and not self.ac:
            C("every wave has taken its message out of the lines the output goes to")
            if self.nobar:
                A(f"v_readfirstlane_b32 s2, v{T0+2}")
                A("s_cmp_eq_u32 s2, 4")
                A("s_cbranch_scc1 L_go")
                A("s_barrier")
                L("L_go")
                A("s_nop 1")
            else:
                A("s_barrier"); A("s_nop 3")
        else: A("s_nop 4")
        self.stamp(6)
        for p in range(4):
            a = self.AC+2*p
            A(f"v_pk_fma_f32 {self.v2(a)}, {self.v2(a)}, {self.v2(fa[p//2])}, {self.v2(PBF+2*p)} op_sel_hi:[1,0,1]")
        OUT = self.AO
        for p in range(4):
            a = self.AC+2*p
            A(f"v_cvt_pk_bf16_f32 v{OUT+p}, v{a}, v{a+1}")
        if self.ac:
            C("regroup through LDS so that every wave writes whole lines, written through")
            A(f"ds_write2st64_b64 v{self.vOut}, {self.v2(OUT)}, {self.v2(OUT+2)} offset0:0 offset1:4")
            A(f"s_cmp_eq_u32 {self.sWave}, 0")
            A("s_waitcnt lgkmcnt(0)")
            A("s_barrier")
            A(f"ds_read_b128 {self.v4(OUT)}, v2")
            A("s_waitcnt lgkmcnt(0)")
            if not self.noout: A(f"buffer_store_dwordx4 {self.v4(OUT)}, v{self.vFo}, {self.sO}, {self.sRecv} offen {self.acfl}")
            A("s_cbranch_scc0 L_fin")
            C("leave nothing dirty in L2: write through the two header lines just read; role 0 also moves the epoch on")
            A(f"buffer_store_dword v{self.vTag}, v1, {self.sW}, 0 offen sc1")
        else:
            A(f"s_or_b32 s2, {self.sRole}, {self.sWave}")
            A("s_cmp_eq_u32 s2, 0")
            for h in range(2):
                A(f"v_permlane16_swap_b32 v{OUT+h}, v{OUT+2+h}")
            if not self.noout: A(f"buffer_store_dwordx4 {self.v4(OUT)}, v{self.vOut}, {self.sO}, 0 offen {self.oflags}")
            A("s_cbranch_scc0 L_fin")
            A("s_mov_b64 exec, 1")
            if not self.nosmall: A(f"buffer_store_dword v{self.vTag}, off, {self.sW}, 0 offset:768")
            A("s_mov_b64 exec, -1")
    def tl(self):
        A = self.A
        A(f"buffer_load_dword v{self.vTag}, off, {self.sW}, 0 offset:768")
        if 'W' in self.tdg: A(f"buffer_load_dword v23, off, {self.sO}, 0")
        if not self.notree:
            A(f"s_lshl_b32 s3, {self.sWave}, 10")
            A(f"s_add_u32 m0, s3, {TK}")
            A("s_nop 0")
            if 'K' in self.tdg: A(f"buffer_load_dwordx4 v1, {self.sKT}, s3 offen {self.tfl} lds")
            A(f"s_add_u32 m0, s3, {TV}")
            A("s_nop 0")
            if 'V' in self.tdg: A(f"buffer_load_dwordx4 v1, {self.sVT}, s3 offen {self.tfl} lds")
            if 'M' in self.tdg: A(f"buffer_load_dwordx2 {self.v2(self.vMask)}, v2, {self.sM}, 0 offen")
    def tree(self):
        A, L, C = self.A, self.L, self.C
        T0, TS, St, LR, FM = self.T0, self.TS, self.St, self.LR, self.FM
        nt = not self.notree and 'E' in self.tdg
        if self.stag:
            L("L_tl"); self.tl(); A("s_branch L_k")
        L("L_e0")
        C("epoch and tree data landed: say hello {die id, tag} with a plain store")
        A("s_waitcnt vmcnt(0)")
        A(f"v_add_u32 v{self.vTag}, 1, v{self.vTag}")
        A(f"v_lshl_add_u32 v235, v0, 7, v{self.vTag}"); A("s_mov_b32 s2, 0x9e3779b1"); A("v_mul_lo_u32 v235, v235, s2")
        if self.ac:
            C("staging write: q*128 + ((2w+g/2)^(q&7))*16 + (g&1)*8 ; read: row=8w+l/8: row*128 + ((l%8)^(row&7))*16")
            o = self.vOut
            A("v_lshrrev_b32 v1, 5, v0"); A(f"s_lshl_b32 s2, {self.sWave}, 1"); A("v_add_u32 v1, s2, v1"); A("v_xor_b32 v1, v1, v0"); A("v_and_b32 v1, 7, v1")
            A(f"v_and_b32 v{o}, 15, v0"); A(f"v_lshlrev_b32 v{o}, 7, v{o}"); A(f"v_lshl_add_u32 v{o}, v1, 4, v{o}")
            A("v_bfe_u32 v1, v0, 4, 1"); A(f"v_lshl_add_u32 v{o}, v1, 3, v{o}"); A(f"v_add_u32 v{o}, {TK}, v{o}")
            A("v_lshrrev_b32 v1, 3, v0"); A("v_xor_b32 v2, v1, v0"); A("v_and_b32 v2, 7, v2"); A("v_lshlrev_b32 v2, 4, v2"); A("v_lshl_add_u32 v2, v1, 7, v2")
            A(f"s_lshl_b32 s2, {self.sWave}, 10"); A(f"s_add_u32 s2, s2, {TK}"); A("v_add_u32 v2, s2, v2")
            C("closing stores: lane 0,1 the received header lines, lane 2 the epoch (role 0), the rest out of range")
            A("v_mov_b32 v1, 0x10000"); A("s_add_u32 s2, s29, 0x80"); A(f"s_cmp_eq_u32 {self.sRole}, 0"); A("s_mov_b32 s3, 0x10000"); A("s_cselect_b32 s3, 0x300, s3")
            A("v_writelane_b32 v1, s29, 0"); A("v_writelane_b32 v1, s2, 1"); A("v_writelane_b32 v1, s3, 2")
        A(f"s_getreg_b32 {self.sPw}, hwreg(HW_REG_XCC_ID)")
        A(f"v_mov_b32 v{FM}, {self.sPw}"); A(f"v_mov_b32 v{FM+1}, v{self.vTag}")
        A(f"s_cmp_lg_u32 {self.sWave}, 0")
        A("s_cbranch_scc1 L_k")
        A("s_mov_b64 exec, 1")
        if not self.nosmall: A(f"buffer_store_dwordx2 {self.v2(FM)}, off, {self.sW}, s28 offset:256 {'sc1' if self.ac else ''}")
        A("s_mov_b64 exec, -1")
        A("s_branch L_k")
        L("L_e1")
        if nt:
            for s in range(4):
                A(f"v_add_u32 v{T0+s}, {TK}, v{self.vKR[s]}")
                A(f"ds_read_b128 {self.v4(self.AO+s*4)}, v{T0+s}")
            self.qk(TS)
        A("s_branch L_k")
        L("L_e2")
        if nt:
            big = -1.0e9 * math.sqrt(128.0)
            B0 = LR
            A(f"v_lshlrev_b32 v{B0}, 16, v{self.vMask}"); A(f"v_and_b32 v{B0+1}, 0xffff0000, v{self.vMask}")
            A(f"v_lshlrev_b32 v{B0+2}, 16, v{self.vMask+1}"); A(f"v_and_b32 v{B0+3}, 0xffff0000, v{self.vMask+1}")
            for r in range(4): A(f"v_sub_f32 v{B0+r}, 1.0, v{B0+r}")
            for r in range(4): A(f"v_mul_f32 v{B0+r}, 0x{f2u(big):08x}, v{B0+r}")
            for qh in range(2):
                for r in range(4):
                    A(f"v_add_f32 v{TS+qh*4+r}, v{TS+qh*4+r}, v{B0+r}")
                A(f"v_max3_f32 v{self.mT+qh}, v{TS+qh*4}, v{TS+qh*4+1}, v{TS+qh*4+2}")
                A(f"v_max_f32 v{self.mT+qh}, v{self.mT+qh}, v{TS+qh*4+3}")
            self.xlane(self.mT, self.mT+1, "v_max_f32")
        A("s_branch L_k")
        L("L_e3")
        if nt:
            for qh in range(2):
                A(f"v_mul_f32 v{self.mT+qh}, {self.sC}, v{self.mT+qh}")
            for qh in range(2):
                for r in range(4):
                    A(f"v_fma_f32 v{TS+qh*4+r}, v{TS+qh*4+r}, {self.sC}, -v{self.mT+qh}")
            for r in range(4):
                for qh in range(2):
                    A(f"v_exp_f32 v{TS+qh*4+r}, v{TS+qh*4+r}")
            A("s_nop 0")
            for qh in range(2):
                A(f"v_add_f32 v{self.lT+qh}, v{TS+qh*4}, v{TS+qh*4+1}")
                A(f"v_add_f32 v{T0+qh}, v{TS+qh*4+2}, v{TS+qh*4+3}")
            A(f"v_pk_add_f32 {self.v2(self.lT)}, {self.v2(self.lT)}, {self.v2(T0)}")
            for qh in range(2):
                for h in range(2):
                    A(f"v_cvt_pk_bf16_f32 v{LR+2+qh*2+h}, v{TS+qh*4+2*h}, v{TS+qh*4+2*h+1}")
        A("s_branch L_k")
        L("L_e4")
        A(f"buffer_load_dwordx2 {self.v2(FM+2)}, off, {self.sW}, s29 offset:256 sc1")
        if nt:
            A(f"ds_read_b64_tr_b16 {self.v2(LR)}, v{self.vTR}")
            self.xlane(self.lT, self.lT+1, "v_add_f32")
            A("s_waitcnt lgkmcnt(0)")
            for qh in range(2):
                A(f"v_mfma_f32_16x16x16_bf16 {self.v4(TS+4*qh)}, {self.v2(LR)}, {self.v2(LR+2+2*qh)}, 0")
        A("s_branch L_k")

    def gen(self):
        A, L, C = self.A, self.L, self.C
        self.o.append(HEADER + f"; @launch grid=(256,1,1) block=(320,1,1) lds={LDS}")
        self.o.append('.amdgcn_target "amdgcn-amd-amdhsa--gfx950"')
        self.o.append(".text"); self.o.append(f".globl {KNAME}"); self.o.append(".p2align 8")
        self.o.append(f".type {KNAME},@function"); L(KNAME)
        self.stamp(0)
        if self.padto or self.dbgt: A("s_memrealtime s[96:97]")
        if self.dbgt: A("s_mov_b32 s95, s2")
        A("s_load_dwordx16 s[4:19], s[0:1], 0")
        if self.prof or self.gl: A("s_load_dwordx2 s[20:21], s[0:1], 64")
        A("s_cmp_ge_u32 s2, 256")
        A("s_cbranch_scc1 L_end")
        A("v_lshrrev_b32 v8, 6, v0")
        A("v_and_b32 v0, 63, v0")
        if self.mapmode == 0:
            A(f"s_and_b32 {self.sRole}, s2, 1"); A(f"s_lshr_b32 {self.sPair}, s2, 1")
        elif self.mapmode == 13:
            A(f"s_bfe_u32 {self.sRole}, s2, 0x10003")
            A(f"s_lshr_b32 {self.sPair}, s2, 4"); A("s_and_b32 s3, s2, 7"); A(f"s_lshl4_add_u32 {self.sPair}, s3, {self.sPair}")
        elif self.mapmode == 14:
            A(f"s_bfe_u32 {self.sRole}, s2, 0x10003")
            A("s_bfe_u32 s3, s2, 0x20004"); A(f"s_and_b32 {self.sPair}, s2, 7"); A(f"s_lshl2_add_u32 {self.sPair}, {self.sPair}, s3")
            A("s_lshr_b32 s3, s2, 6"); A("s_lshl_b32 s3, s3, 5"); A(f"s_add_u32 {self.sPair}, {self.sPair}, s3")
        else:
            b = self.mapmode
            A(f"s_bfe_u32 {self.sRole}, s2, {0x10000+b}")
            A(f"s_lshr_b32 {self.sPair}, s2, {b+1}"); A(f"s_lshl_b32 {self.sPair}, {self.sPair}, {b}")
            A(f"s_and_b32 s3, s2, {(1<<b)-1}"); A(f"s_or_b32 {self.sPair}, {self.sPair}, s3")
        A(f"v_readfirstlane_b32 {self.sWave}, v8")
        A(f"s_lshl1_add_u32 s22, {self.sPair}, {self.sRole}")
        A("s_lshl_b32 s22, s22, 18")
        A("v_lshrrev_b32 v9, 4, v0")
        A("v_lshlrev_b32 v10, 1, v9"); A("v_xor_b32 v10, v10, v0"); A("v_and_b32 v10, 15, v10")
        A(f"s_sub_u32 {self.sWave}, {self.sWave}, 1")
        A("s_cbranch_scc0 L_comp")
        self.loader()
        L("L_comp")
        if not (self.prof or self.gl): A("s_load_dwordx2 s[20:21], s[0:1], 64")
        if self.touch:
            A(f"s_cmp_lg_u32 {self.sWave}, 0")
            A("s_cbranch_scc1 L_notouch")
            A("s_waitcnt lgkmcnt(0)")
            A("s_add_u32 s2, s8, s22"); A("s_addc_u32 s3, s9, 0")
            A("v_mov_b32 v20, s4"); A("v_mov_b32 v21, s5")
            for ln, r in enumerate((10, 12, 14, 18, 20, 2)[:self.touch-1]):
                A(f"v_writelane_b32 v20, s{r}, {ln+1}"); A(f"v_writelane_b32 v21, s{r+1}, {ln+1}")
            A(f"global_load_ubyte v{self.vDum}, v[20:21], off")
            L("L_notouch")
        A(f"s_lshl_b32 {self.sW4}, {self.sWave}, 12")
        A("s_and_b32 s23, s2, 7"); A("s_lshl_b32 s23, s23, 5"); A("s_lshr_b32 s58, s2, 3"); A(f"s_or_b32 s58, s58, {self.sWave}")
        A("s_cselect_b32 s58, 0, 1")
        C("tree DMA source offset: rows 4w+g")
        A("v_lshlrev_b32 v1, 8, v9"); A("v_lshl_add_u32 v1, v10, 4, v1")
        A(f"s_and_b32 s2, {self.sWave}, 1"); A("s_lshl_b32 s2, s2, 7"); A("v_xor_b32 v1, s2, v1")
        C("mask offset: (q%8)*16 + g*8 (+128 for g>=2: out of range)")
        A("v_and_b32 v2, 7, v0"); A("v_lshlrev_b32 v2, 4, v2"); A("v_lshl_add_u32 v2, v9, 3, v2")
        A("v_lshrrev_b32 v11, 5, v0"); A("v_lshl_add_u32 v2, v11, 7, v2")
        C("K/Q read lane bases: rho*256 + ((4s+g)^(2*(rho%8)))*16")
        A("v_and_b32 v10, 15, v0"); A("v_and_b32 v11, 7, v0"); A("v_lshlrev_b32 v11, 1, v11"); A("v_xor_b32 v11, v11, v9")
        A("v_lshlrev_b32 v3, 8, v10"); A("v_lshl_add_u32 v3, v11, 4, v3")
        for s in range(1, 4): A(f"v_xor_b32 v{3+s}, {64*s}, v3")
        A(f"v_lshlrev_b32 v{self.vFo}, 4, v0")
        C("out offset: (16*(row&1)+q)*256 + role*128 + wave*32 + (row>>1)*16")
        A(f"v_and_b32 v{self.vOut}, 31, v0"); A(f"v_lshlrev_b32 v{self.vOut}, 8, v{self.vOut}")
        A("v_lshrrev_b32 v11, 5, v0"); A(f"v_lshl_add_u32 v{self.vOut}, v11, 4, v{self.vOut}")
        A(f"s_lshl2_add_u32 s2, {self.sRole}, {self.sWave}"); A("s_lshl_b32 s3, s2, 5"); A(f"v_add_u32 v{self.vOut}, s3, v{self.vOut}")
        if self.fakeout == 1:
            A("s_lshl_b32 s3, s2, 10"); A(f"v_lshl_add_u32 v{self.vOut}, v0, 4, s3")
        if self.fakeout == 2:
            A(f"s_lshl_b32 s3, {self.sWave}, 11"); A(f"s_lshl_b32 s23, {self.sRole}, 7"); A("s_add_u32 s3, s3, s23")
            A("v_lshrrev_b32 v11, 3, v0"); A("v_and_b32 v12, 7, v0"); A("v_lshlrev_b32 v12, 4, v12"); A("v_lshl_add_u32 v11, v11, 8, v12"); A(f"v_add_u32 v{self.vOut}, s3, v11")
        if self.fakeout == 3:
            A(f"s_lshr_b32 s3, {self.sWave}, 1"); A("s_lshl_b32 s3, s3, 12"); A(f"s_lshl_b32 s23, {self.sRole}, 7"); A("s_add_u32 s3, s3, s23")
            A(f"s_and_b32 s23, {self.sWave}, 1"); A("s_lshl_b32 s23, s23, 6"); A("s_add_u32 s3, s3, s23")
            A("v_and_b32 v11, 15, v0"); A("v_lshrrev_b32 v12, 4, v0"); A("v_lshlrev_b32 v12, 4, v12"); A("v_lshl_add_u32 v11, v11, 8, v12"); A(f"v_add_u32 v{self.vOut}, s3, v11")
        C("transposed-read lane bases: row=l/4, c=l%4")
        A("v_lshrrev_b32 v10, 2, v0"); A("v_bfe_u32 v12, v0, 1, 1"); A("v_and_b32 v13, 1, v0"); A("v_lshlrev_b32 v13, 3, v13")
        C(" tree V (256-B rows): row*256 + ((8*role+2w+c/2)^(2*(row%8)))*16 + (c%2)*8")
        A("s_lshl_b32 s2, s2, 1"); A("v_add_u32 v14, s2, v12"); A("v_and_b32 v11, 7, v10"); A("v_lshlrev_b32 v11, 1, v11"); A("v_xor_b32 v11, v11, v14")
        A("v_lshl_add_u32 v8, v10, 8, v13"); A("v_lshl_add_u32 v8, v11, 4, v8"); A(f"v_add_u32 v8, {TV}, v8")
        C(" V ring (128-B rows): row*128 + ((2w+c/2)^(row&6))*16 + (c%2)*8")
        A("v_and_b32 v14, 7, v14"); A("v_and_b32 v11, 6, v10"); A("v_xor_b32 v11, v11, v14")
        A("v_lshl_add_u32 v7, v10, 7, v13"); A("v_lshl_add_u32 v7, v11, 4, v7")
        A("v_lshlrev_b32 v11, 3, v0")
        A(f"v_add_u32 v{self.vPR}, {PR}, v11")
        A(f"s_lshr_b32 s2, {self.sW4}, 2"); A(f"v_add_u32 v{self.vPW}, s2, v{self.vPR}")
        A(f"v_add_u32 v{self.vLX}, {MX}, v11")
        A("s_waitcnt lgkmcnt(0)")
        A(f"s_lshl_b32 {self.sT}, {self.sPair}, 11")
        self.srd(36, 10, 11, self.sT, 2048)
        self.srd(40, 12, 13, self.sT, 2048)
        A(f"s_lshr_b32 {self.sT}, {self.sPair}, 3"); A(f"s_lshl_b32 {self.sT}, {self.sT}, 7")
        self.srd(44, 14, 15, self.sT, 128)
        A(f"s_lshl_b32 s3, {self.sPair}, 13")
        self.srd(48, 16, 17, "s3", 8192)
        A("s_add_u32 s56, s18, s23"); A("s_addc_u32 s57, s19, 0"); A("s_mov_b32 s59, 0x20000")
        A(f"s_mul_i32 {self.sT}, {self.sPair}, 9216")
        self.srd(52, 20, 21, self.sT, 9216)
        A(f"s_lshl2_add_u32 {self.sSend}, {self.sRole}, {self.sWave}"); A(f"s_xor_b32 {self.sRecv}, {self.sSend}, 4")
        for r in (self.sSend, self.sRecv):
            A(f"s_add_u32 {r}, {r}, 1"); A(f"s_lshl_b32 {r}, {r}, 10")
        if self.mbo:
            C("mailbox: 8 whole lines of the receiver's output half per wave")
            A(f"s_lshl_b32 {self.sRecv}, {self.sWave}, 11"); A(f"s_lshl_b32 s2, {self.sRole}, 7"); A(f"s_add_u32 {self.sRecv}, {self.sRecv}, s2")
            A(f"s_xor_b32 {self.sSend}, {self.sRecv}, 0x80")
            A("v_lshrrev_b32 v11, 3, v0"); A(f"v_and_b32 v{self.vFo}, 7, v0"); A(f"v_lshlrev_b32 v{self.vFo}, 4, v{self.vFo}"); A(f"v_lshl_add_u32 v{self.vFo}, v11, 8, v{self.vFo}")
        A(f"s_mul_i32 s28, {self.sRole}, 384"); A("s_sub_u32 s29, 384, s28")
        A(f"s_lshl2_add_u32 {self.s4k}, {self.sWave}, s29"); A(f"s_add_u32 {self.s4k}, {self.s4k}, 0x80")
        C("header store offsets: lanes 0-31 w, lane 32 this wave's check word, the rest out of range")
        A(f"v_lshlrev_b32 v{self.vL16}, 2, v0"); A(f"s_lshl2_add_u32 s2, {self.sWave}, 0x80")
        A("v_cmp_lt_u32 vcc, 32, v0"); A("v_mov_b32 v11, 0x10000")
        A(f"v_writelane_b32 v{self.vL16}, s2, 32")
        A(f"v_cndmask_b32 v{self.vL16}, v{self.vL16}, v11, vcc")
        A(f"v_and_b32 v{self.vDum}, 31, v0"); A(f"v_lshlrev_b32 v{self.vDum}, 2, v{self.vDum}")
        c = (128 ** -0.5) * math.log2(math.e)
        A(f"s_mov_b32 {self.sC}, 0x{f2u(c):08x}")
        A(f"s_mov_b32 {self.sRem}, {N}")
        A(f"s_mov_b32 {self.sRd}, {self.sW4}")
        A(f"s_mov_b32 {self.sIdx}, 0"); A(f"s_mov_b32 {self.sP}, 0")
        for qh in range(2):
            A(f"v_mov_b32 v{self.mR[qh]}, 0x{f2u(-3.0e38):08x}")
            A(f"v_mov_b32 v{self.lS[qh]}, 0")
        for s in range(4):
            A(f"v_add_u32 v{self.T0+s}, {QS}, v{self.vKR[s]}")
        A(f"s_mov_b32 s78, {self.sWave}")
        A("s_mov_b32 s76, 0x200000")
        if self.stag:
            A(f"s_lshr_b32 s2, {self.sPair}, 3"); A(f"s_and_b32 s2, s2, {self.stag-1}"); A(f"s_sub_u32 {self.sSk}, {15 if self.stag > 4 else 13}, s2")
            if self.stag == 8: A(f"s_max_u32 {self.sSk}, {self.sSk}, 9")
        else: self.tl()
        if self.pre:
            A(f"s_lshr_b32 s2, {self.sPair}, 3"); A(f"s_add_u32 s2, s2, {self.sWave}"); A("s_and_b32 s2, s2, 3"); A(f"s_lshl1_add_u32 s3, {self.sRole}, 0")
            A("s_add_u32 s2, s2, s3")
            A(f"s_sub_u32 {self.sSk}, 15, s2"); A("s_sub_u32 s22, 16, s2")
        self.compute()
        L("L_fin")
        if self.dbgt:
            A("s_memrealtime s[98:99]"); A("s_waitcnt lgkmcnt(0)")
            A("s_cmp_ge_u32 s95, 8"); A("s_cbranch_scc1 L_end")
            self.srd(56, 18, 19, None, 64)
            A("s_getreg_b32 s3, hwreg(HW_REG_XCC_ID)"); A("s_lshl_b32 s3, s3, 3")
            A("s_and_b32 s96, s96, 0xfffff"); A("s_and_b32 s98, s98, 0xfffff")
            A("v_mov_b32 v10, s96"); A("v_mov_b32 v11, s98")
            A("buffer_store_dwordx2 v[10:11], off, s[56:59], s3 sc1")
        if self.padto:
            if self.padx is not None:
                A("s_getreg_b32 s3, hwreg(HW_REG_XCC_ID)"); A("s_and_b32 s3, s3, 7"); A(f"s_cmp_lg_u32 s3, {self.padx}"); A("s_cbranch_scc1 L_end")
            L("L_pad")
            A("s_memrealtime s[98:99]"); A("s_waitcnt lgkmcnt(0)"); A("s_sub_u32 s98, s98, s96")
            A(f"s_cmp_lt_u32 s98, {self.padto}"); A("s_cbranch_scc1 L_pad")
        if self.stamps:
            A("s_waitcnt vmcnt(0)")
            self.stamp(7)
            A("s_getreg_b32 s3, hwreg(HW_REG_XCC_ID)")
            A("s_waitcnt lgkmcnt(0)")
            A("v_mov_b32 v10, 0")
            for k in range(self.nstamp):
                A(f"v_writelane_b32 v10, s{80+2*k}, {k}")
            A("v_writelane_b32 v10, s76, 12"); A(f"v_writelane_b32 v10, {self.sPw}, 11")
            A("v_writelane_b32 v10, s3, 14")
            A(f"v_writelane_b32 v10, {self.sRole}, 15")
            A(f"v_writelane_b32 v10, {self.sPair}, 13")
            A(f"s_lshl_b32 s2, {self.sPair}, 1"); A(f"s_add_u32 s2, s2, {self.sRole}"); A("s_lshl_b32 s2, s2, 2"); A(f"s_add_u32 s2, s2, {self.sWave}")
            A("s_lshl_b32 s2, s2, 6"); A("s_add_u32 s2, s2, 0x800000")
            self.srd(52, 20, 21, None, 0x1000000)
            A("v_lshlrev_b32 v11, 2, v0")
            A("v_cmp_gt_u32 vcc, 16, v0")
            A("s_and_saveexec_b64 s[22:23], vcc")
            A(f"buffer_store_dword v10, v11, {self.sW}, s2 offen")
        L("L_end")
        A("s_endpgm")
        self.tree()
        self.o.append('.section .rodata,"a"'); self.o.append(".p2align 6"); self.o.append(f".amdhsa_kernel {KNAME}")
        for d in ("next_free_vgpr 256", "next_free_sgpr 102", "accum_offset 256", "group_segment_fixed_size 0", "kernarg_size 72",
                  "user_sgpr_count 2", "user_sgpr_kernarg_segment_ptr 1", "system_sgpr_workgroup_id_x 1"):
            self.o.append("  .amdhsa_"+d)
        self.o.append(".end_amdhsa_kernel")
        return self.finish()

    def finish(self):
        def build(nseg):
            out = []
            for l in self.o:
                if l == "@WARMCALL":
                    if self.warm:
                        out.append("  ; instruction-cache warm-up: hop (EXEC=0) through code this workgroup runs later")
                        out.append(f"  s_cmp_ge_u32 s78, {nseg}")
                        out.append("  s_cbranch_scc1 L_hskip")
                        out.append("  s_mov_b64 exec, 0")
                        for k in range(nseg):
                            out.append(f"  s_cmp_eq_u32 s78, {k}")
                            out.append(f"  s_cbranch_scc1 L_h{k*self.seg}")
                        out.append("L_hret:")
                        out.append("  s_mov_b64 exec, -1")
                        out.append("  s_add_u32 s78, s78, 4")
                        out.append("L_hskip:")
                        out.append("@HOPON")
                else: out.append(l)
            return out
        if not self.warm:
            return "\n".join(l for l in build(0) if not l.startswith("@"))+"\n"
        nseg = 1
        while True:
            base = build(nseg)
            tmp = []
            for l in base:
                if l.startswith("@"): continue
                tmp.append(l)
                if l == "L_hret:": tmp += [f"L_h{k*self.seg}:" for k in range(nseg)]
            sz = sizes_of(tmp)
            res = []; addr = 0; k = 0; nh = 0; on = False; lastline = -1; intext = True
            for l in base:
                if l == "@HOPON": on = True; lastline = addr//self.warm; continue
                if l == "@HOPOFF": on = False; continue
                if l.startswith(".section"): intext = False
                if intext and isinstr(l):
                    if on and addr//self.warm != lastline:
                        lastline = addr//self.warm
                        res.append(("hop", nh)); nh += 1; addr += 4
                    addr += sz[k]; k += 1
                res.append(l)
            need = -(-nh//self.seg)
            if need <= nseg: break
            nseg = need
        start = res.index("L_hret:")
        order = [x[1] for x in res[start:] if isinstance(x, tuple)] + [x[1] for x in res[:start] if isinstance(x, tuple)]
        out = []
        for x in res:
            if isinstance(x, tuple):
                p = order.index(x[1])
                out.append(f"L_h{p}:")
                last = (p+1) % self.seg == 0 or p+1 == nh
                out.append(f"  s_cbranch_execz {'L_hret' if last else 'L_h%d' % (p+1)}")
            else:
                out.append(x)
                if x == "L_hret:":
                    out += [f"L_h{k*self.seg}:" for k in range(nseg) if k*self.seg >= nh]
        return "\n".join(out)+"\n"

def sizes_of(lines):
    import subprocess, re, tempfile
    d = tempfile.mkdtemp()
    open(d+"/a.s", "w").write("\n".join(lines)+"\n")
    subprocess.run(["clang", "-x", "assembler", "-target", "amdgcn-amd-amdhsa", "-mcpu=gfx950", "-c", d+"/a.s", "-o", d+"/a.o"], check=True)
    dis = subprocess.run(["llvm-objdump", "-d", "--mcpu=gfx950", d+"/a.o"], capture_output=True, text=True).stdout
    sz = []
    for l in dis.splitlines():
        m = re.search(r"// ([0-9A-F]{12}): ((?:[0-9A-F]{8} ?)+)", l)
        if m: sz.append(4*len(m.group(2).split()))
    return sz
def isinstr(l):
    return l.startswith("  ") and not l.startswith("  ;") and not l.startswith("  .")

if __name__ == "__main__":
    out = sys.argv[1]
    kw = eval("dict(" + (sys.argv[2] if len(sys.argv) > 2 else "") + ")")
    open(out, "w").write(Gen(**kw).gen())
```
